```python
import torch

def _softmax(x, axis=-1):
    return torch.softmax(x, dim=axis)
def _gelu(x):
    return torch.nn.functional.gelu(x, approximate="tanh")
def _silu(x):
    return torch.nn.functional.silu(x)
def _sigmoid(x):
    return torch.sigmoid(x)
def _layernorm(x, axis=-1, eps=1e-5):
    m = x.mean(dim=axis, keepdim=True)
    v = x.var(dim=axis, keepdim=True, unbiased=False)
    return (x - m) / torch.sqrt(v + eps)
def _scatter_add(tgt, idx, src, axis=0):
    return tgt.clone().index_add_(axis, idx, src)
def _segment_sum(src, seg, n):
    out = torch.zeros((n,) + src.shape[1:], dtype=src.dtype)
    return out.index_add_(0, seg, src)
def _pad(x, pw):
    flat = tuple(v for pair in reversed(pw) for v in pair)
    return torch.nn.functional.pad(x, flat)

kernel_name = 'standalone__mha_block_cached__near_ridge'

def setup_inputs():

    _w = (lambda a: (lambda t: t.to(torch.bfloat16) if t.is_floating_point() else t)(torch.as_tensor(a)))
    B, Sq, D = 8, 192, 576
    H, Sk, Dh = 32, 512, 128
    return {
        "x": _w((lambda *s: torch.randn(*s, dtype=torch.bfloat16) * 0.8)(B, Sq, D)),
        "k_cache": _w((lambda *s: torch.randn(*s, dtype=torch.bfloat16) * 0.8)(B, H, Sk, Dh)),
        "v_cache": _w((lambda *s: torch.randn(*s, dtype=torch.bfloat16) * 0.05)(B, H, Sk, Dh)),
        "wq": _w((lambda *s: torch.randn(*s, dtype=torch.bfloat16) * 0.8)(D, H * Dh) * (D ** -0.5)),
        "wo": _w((lambda *s: torch.randn(*s, dtype=torch.bfloat16) * 0.05)(H * Dh, D) * ((H * Dh) ** -0.5)),
    }

def reference(x, k_cache, v_cache, wq, wo):
    B, Sq, D = x.shape
    H, Dh = 32, 128
    q = (lambda x, *d: x.permute(*d))((x @ wq).reshape(B, Sq, H, Dh), 0, 2, 1, 3)
    scores = torch.einsum("bhqd,bhkd->bhqk", q, k_cache) * (Dh ** -0.5)
    p = _softmax(scores, axis=-1)
    o = torch.einsum("bhqk,bhkd->bhqd", p, v_cache)
    return (lambda x, *d: x.permute(*d))(o, 0, 2, 1, 3).reshape(B, Sq, H * Dh) @ wo
```

```python
import re

TRANS = ("v_exp_f32", "v_log_f32", "v_rcp_f32", "v_rsq_f32", "v_sqrt_f32", "v_sin_f32", "v_cos_f32")


def split_ops(s):
    out, depth, cur = [], 0, ""
    for ch in s:
        if ch == "[":
            depth += 1
        elif ch == "]":
            depth -= 1
        if ch == "," and depth == 0:
            out.append(cur.strip())
            cur = ""
        else:
            cur += ch
    if cur.strip():
        out.append(cur.strip())
    return out


def regs_of(tok):
    tok = tok.strip()
    m = re.fullmatch(r"-?\|?([vsa])(\d+)\|?", tok)
    if m:
        return [(m.group(1), int(m.group(2)))]
    m = re.fullmatch(r"([vsa])\[(\d+):(\d+)\]", tok)
    if m:
        return [(m.group(1), i) for i in range(int(m.group(2)), int(m.group(3)) + 1)]
    if tok in ("vcc", "exec", "m0", "scc", "vcc_lo", "vcc_hi", "exec_lo", "exec_hi"):
        return [("x", tok.split("_")[0])]
    return []


class Ins:
    __slots__ = ("text", "op", "kind", "dst", "src", "srcA", "srcB", "srcC", "passes", "data", "mods", "ws")

    def __init__(self, text):
        self.text = text
        t = text.split(";")[0].strip()
        parts = t.split(None, 1)
        self.op = parts[0]
        rest = parts[1] if len(parts) > 1 else ""
        ops = split_ops(rest)
        self.mods = []
        if ops:
            last = ops[-1].split()
            ops[-1] = last[0]
            self.mods = last[1:]
        op = self.op
        R = [regs_of(o) for o in ops]
        self.dst, self.src = [], []
        self.srcA = self.srcB = self.srcC = []
        self.passes = 0
        self.data = []
        self.ws = 1
        flat = lambda l: [r for x in l for r in x]
        if op.startswith("v_mfma"):
            self.kind = "mfma"
            self.dst = R[0]
            self.srcA, self.srcB, self.srcC = R[1], R[2], R[3]
            self.src = R[1] + R[2] + R[3]
            self.passes = 8 if "32x32x16" in op else 4
        elif op.startswith("v_permlane"):
            self.kind = "permlane"
            self.dst = R[0] + R[1]
            self.src = R[0] + R[1]
        elif op.startswith("v_readfirstlane") or op.startswith("v_readlane"):
            self.kind = "readlane"
            self.dst = R[0]
            self.src = flat(R[1:])
        elif op.startswith("v_"):
            self.kind = "trans" if op.split("_e")[0] in TRANS or any(op.startswith(x) for x in TRANS) else "valu"
            if op == "v_nop":
                pass
            elif op.startswith("v_add_co") or op.startswith("v_sub_co") or op.startswith("v_addc_co"):
                self.dst = R[0] + R[1]
                self.src = flat(R[2:])
            else:
                self.dst = R[0]
                self.src = flat(R[1:])
                if op.startswith("v_fmac") or op.startswith("v_mac"):
                    self.src += R[0]
                if op.startswith("v_cndmask") and len(ops) == 3:
                    self.src += [("x", "vcc")]
        elif op.startswith("ds_read") or op.startswith("ds_bpermute") or op.startswith("ds_swizzle"):
            self.kind = "dsread"
            self.dst = R[0]
            self.src = flat(R[1:])
        elif op.startswith("ds_"):
            self.kind = "dswrite"
            self.src = flat(R)
        elif op.startswith("buffer_load") or op.startswith("global_load"):
            if "lds" in self.mods or "_lds_" in op:
                self.kind = "dma"
                self.src = flat(R) + [("x", "m0")]
            else:
                self.kind = "vload"
                self.dst = R[0]
                self.src = flat(R[1:])
        elif op.startswith("buffer_store") or op.startswith("global_store"):
            self.kind = "vstore"
            self.src = flat(R)
            d = R[0] if op.startswith("buffer") else R[1]
            if len(d) >= 3:
                self.data = d
        elif op.startswith("buffer_atomic") or op.startswith("global_atomic"):
            self.kind = "vatomic"
            self.src = flat(R)
            if "sc0" in self.mods:
                self.dst = R[0]
        elif op.startswith("buffer_") :
            self.kind = "vmisc"
        elif op == "s_nop":
            self.kind = "nop"
            self.ws = int(ops[0], 0) + 1
        elif op == "s_waitcnt":
            self.kind = "wait"
        elif op.startswith("s_load") or op.startswith("s_memrealtime") or op.startswith("s_memtime") or op.startswith("s_buffer_load"):
            self.kind = "smem"
            self.dst = R[0]
            self.src = flat(R[1:])
        elif op.startswith("s_cmp") or op.startswith("s_cbranch") or op in ("s_branch", "s_barrier", "s_endpgm", "s_setprio", "s_sleep"):
            self.kind = "sctl"
            self.src = flat(R)
        elif op.startswith("s_"):
            self.kind = "salu"
            self.dst = R[0]
            self.src = flat(R[1:])
            if "saveexec" in op:
                self.dst = R[0] + [("x", "exec")]
        else:
            raise ValueError("unknown op " + text)


class Asm:
    def __init__(self):
        self.out = []
        self.reset_state()
        self.maxv = 0
        self.nops_inserted = 0
        self.ninstr = 0

    def reset_state(self):
        self.hist = []
        self.pos = 0
        self.lgkm = []
        self.vm = []
        self.smem_pending = False

    def raw(self, text):
        self.out.append(text)

    def comment(self, text):
        self.out.append("; " + text)

    def label(self, name, drain=True):
        if drain:
            self.drain_hazards()
        self.out.append(name + ":")
        if drain:
            assert not any(self.lgkm), f"pending ds_read at label {name}"
            assert not any(self.vm), f"pending vload at label {name}"
            self.hist = []

    def drain_hazards(self):
        need = 0
        for ins, p in self.hist:
            el = self.pos - p - 1
            req = 0
            if ins.kind == "mfma":
                req = 12 if ins.passes == 8 else 8
            elif ins.kind in ("valu", "trans", "permlane", "readlane"):
                req = 5 if any(r[0] in "sx" for r in ins.dst) else 2
            elif ins.kind == "salu" and ("x", "m0") in ins.dst:
                req = 1
            elif ins.kind == "vstore" and ins.data:
                req = 2
            need = max(need, req - el)
        if need > 0:
            self._nop(need)

    def _nop(self, n):
        while n > 0:
            k = min(n, 16)
            self.out.append(f"    s_nop {k-1}")
            self.pos += k
            self.nops_inserted += k
            n -= k

    def forget_vm(self):
        self.vm = []

    def __call__(self, text):
        for line in text.strip().split("\n"):
            line = line.strip()
            if line:
                self.emit(line)

    def emit(self, text):
        ins = Ins(text)
        for r in ins.dst + ins.src:
            if r[0] == "v":
                self.maxv = max(self.maxv, r[1] + 1)
        if ins.op == "s_branch" or ins.op.startswith("s_cbranch"):
            self.drain_hazards()
            assert not any(x - {("x", "smem")} and ("x", "smem") not in x for x in self.lgkm), "pending ds_read at branch " + text
            assert not any(self.vm), "pending vload at branch " + text
        if ins.kind == "wait":
            self._apply_wait(text)
        else:
            self._auto_wait(ins)
            self._hazards(ins)
        self.out.append("    " + text)
        self.ninstr += 1
        self.hist.append((ins, self.pos + ins.ws - 1))
        self.pos += ins.ws
        self.hist = [(i, p) for (i, p) in self.hist if self.pos - p <= 20]
        if ins.kind == "dsread":
            self.lgkm.append(set(ins.dst))
        elif ins.kind == "dswrite":
            self.lgkm.append(set())
        elif ins.kind == "smem":
            self.smem_pending = True
            self.lgkm.append(set(ins.dst) | {("x", "smem")})
        elif ins.kind in ("vload", "vatomic"):
            self.vm.append(set(ins.dst))
        elif ins.kind in ("dma", "vstore", "vmisc"):
            self.vm.append(set())
        if ins.op in ("s_branch", "s_endpgm"):
            self.reset_state_keep_pos()

    def reset_state_keep_pos(self):
        self.hist = []
        self.lgkm = []
        self.vm = []

    def _apply_wait(self, text):
        m = re.search(r"vmcnt\((\d+)\)", text)
        if m:
            n = int(m.group(1))
            if len(self.vm) > n:
                self.vm = self.vm[len(self.vm) - n:] if n else []
        m = re.search(r"lgkmcnt\((\d+)\)", text)
        if m:
            n = int(m.group(1))
            has_smem = any(("x", "smem") in s for s in self.lgkm)
            if has_smem:
                assert n == 0, "counted lgkm wait with smem outstanding"
            if len(self.lgkm) > n:
                self.lgkm = self.lgkm[len(self.lgkm) - n:] if n else []

    def _auto_wait(self, ins):
        touched = set(ins.dst) | set(ins.src)
        need = None
        for i, s in enumerate(self.lgkm):
            if s & touched:
                need = i
        wl = wv = None
        if need is not None:
            n = len(self.lgkm) - 1 - need
            if any(("x", "smem") in s for s in self.lgkm):
                n = 0
            wl = min(n, 15)
        need = None
        for i, s in enumerate(self.vm):
            if s & touched:
                need = i
        if need is not None:
            wv = min(len(self.vm) - 1 - need, 63)
        if wl is not None or wv is not None:
            t = "s_waitcnt" + (f" vmcnt({wv})" if wv is not None else "") + (f" lgkmcnt({wl})" if wl is not None else "")
            self.emit(t)

    def _hazards(self, ins):
        need = 0
        src, dst = set(ins.src), set(ins.dst)
        isv = ins.kind in ("valu", "trans", "permlane", "readlane")
        ismem = ins.kind in ("dsread", "dswrite", "dma", "vload", "vstore", "vatomic")
        for prev, p in self.hist:
            el = self.pos - p - 1
            req = 0
            pd = set(prev.dst)
            if prev.kind == "mfma":
                big = 12 if prev.passes == 8 else 8
                if ins.kind == "mfma":
                    if pd & (set(ins.srcA) | set(ins.srcB)):
                        req = max(req, big)
                    c = set(ins.srcC)
                    if pd & c:
                        if not (ins.srcC == prev.dst and ins.passes == prev.passes):
                            req = max(req, big - 2)
                    if (pd & dst) and not (ins.dst == prev.dst and ins.passes == prev.passes):
                        req = max(req, big)
                elif isv:
                    if pd & (src | dst):
                        req = max(req, big)
                    if set(prev.srcC) & dst:
                        req = max(req, 7 if prev.passes == 8 else 3)
                elif ismem:
                    if pd & (src | dst):
                        req = max(req, big)
                    if set(prev.srcC) & dst:
                        req = max(req, 7 if prev.passes == 8 else 3)
            elif prev.kind in ("valu", "trans", "permlane", "readlane"):
                pv = {r for r in pd if r[0] == "v"}
                psg = {r for r in pd if r[0] in "sx"}
                if ins.kind == "mfma" and pv & src:
                    req = max(req, 2)
                if ins.kind == "mfma" and ("x", "exec") in psg:
                    req = max(req, 4)
                if prev.kind == "trans" and isv and ins.kind != "trans" and pv & src:
                    req = max(req, 1)
                if prev.kind == "trans" and ismem and pv & src:
                    req = max(req, 1)
                if ins.kind == "readlane" and pv & src:
                    req = max(req, 1)
                if ins.kind == "permlane" and pv & src:
                    req = max(req, 2)
                if isv and ("dpp" in ins.text or "row_" in ins.text or "quad_perm" in ins.text) and pv & src:
                    req = max(req, 2)
                if psg & src:
                    if ismem:
                        req = max(req, 5)
                    elif ins.kind == "readlane":
                        req = max(req, 4)
                    elif isv or ins.kind == "mfma":
                        req = max(req, 2)
            elif prev.kind == "salu":
                if ("x", "m0") in pd and ins.kind == "dma":
                    req = max(req, 1)
            elif prev.kind == "vstore" and prev.data:
                if set(prev.data) & dst:
                    req = max(req, 2)
            need = max(need, req - el)
        if need > 0:
            self._nop(need)

    def text(self):
        return "\n".join(self.out) + "\n"
```

```python
import sys, struct, math
sys.path.insert(0, "gen")
from asmdsl import Asm

KNAME = "standalone__mha_block_cached__near_ridge_kernel"
STAMP_OFF = 192 << 20
HEADER = open("standalone__mha_block_cached__near_ridge.s.ref").read().split("; Override")[0]

WS_O = 0
WS_P = 16 << 20
P_CU = 4 * 14 * 1024

KR = 0
VR = 65536
WQR = 0
XR = 81920
QR = 114688
LB = 131072
FLAG = 131072 + 4096


def f32bits(x):
    return struct.unpack("<I", struct.pack("<f", x))[0]


def kslot(s): return (s + 3) % 4
def vslot(s): return s % 4


class Cfg:
    nt_kv = False
    stamps = False
    prio = True
    nb = 6


def vr(a, n):
    return f"v[{a}:{a+n-1}]"


def stamp(a, cfg, slot, only_wave=None):
    if not cfg.stamps:
        return
    a("s_memrealtime s[68:69]")
    a("s_waitcnt lgkmcnt(0)")
    a("v_mov_b32 v164, s68")
    a("v_mov_b32 v165, s69")
    a(f"v_mov_b32 v166, {slot*8}")
    a("s_mov_b64 exec, 1")
    a("buffer_store_dwordx2 v[164:165], v166, s[64:67], s70 offen")
    a("s_mov_b64 exec, -1")


def prologue(a, cfg, name):
    a.raw(f".globl {name}")
    a.raw(".p2align 8")
    a.raw(f".type {name},@function")
    a.raw(f"{name}:")
    a.reset_state()
    if cfg.stamps:
        a("s_memrealtime s[72:73]")
    a("s_load_dwordx16 s[4:19], s[0:1], 0")
    a("s_cmp_ge_u32 s2, 256")
    a(f"s_cbranch_scc1 L_end_{name}")
    a("s_and_b32 s20, s2, 7")
    a("s_lshr_b32 s21, s2, 3")
    a("s_lshr_b32 s22, s21, 2")
    a("s_and_b32 s21, s21, 3")
    a("s_lshl_b32 s23, s20, 2")
    a("s_add_u32 s23, s23, s21")
    a("v_lshrrev_b32 v1, 6, v0")
    a("v_and_b32 v0, 63, v0")
    a("v_readfirstlane_b32 s24, v1")
    a("s_lshl_b32 s70, s2, 7")


def srd(a, d, lo, hi, off_sgpr, nrec):
    if off_sgpr is None:
        a(f"s_mov_b32 s{d}, s{lo}")
        a(f"s_mov_b32 s{d+1}, s{hi}")
    else:
        a(f"s_add_u32 s{d}, s{lo}, {off_sgpr}")
        a(f"s_addc_u32 s{d+1}, s{hi}, 0")
    a(f"s_mov_b32 s{d+2}, {nrec}")
    a(f"s_mov_b32 s{d+3}, 0x20000")


def stamp_srd(a, cfg):
    if cfg.stamps:
        srd(a, 64, 18, 19, STAMP_OFF, 0x100000)


class DmaTrack:
    def __init__(self):
        self.q = []

    def issue(self, tag):
        self.q.append(tag)

    def wait_count(self, tags):
        last = -1
        for i, t in enumerate(self.q):
            if t in tags:
                last = i
        return len(self.q) - 1 - last


def dma(a, vo, srd_, soff, ldsoff, nt=False):
    a(f"s_add_u32 m0, s27, {ldsoff}")
    a(f"s_mov_b32 s28, {soff}")
    a(f"buffer_load_dwordx4 {vo}, {srd_}, s28 offen{' nt' if nt else ''} lds")


def swz8_voff(a, dst, pitch, jreg, jmul):
    a("v_lshrrev_b32 v1, 4, v0")
    a(f"s_and_b32 s25, {jreg}, 1")
    a("s_lshl_b32 s25, s25, 2")
    a("v_add_u32 v1, s25, v1")
    a("v_and_b32 v2, 7, v0")
    a("v_xor_b32 v1, v1, v2")
    a("v_lshlrev_b32 v1, 4, v1")
    a("v_lshrrev_b32 v2, 3, v0")
    a(f"v_mul_u32_u24 v2, {pitch}, v2")
    a(f"s_mul_i32 s25, {jreg}, {jmul}")
    a(f"v_add3_u32 {dst}, v1, v2, s25")


def swz4_voff(a, dst, pitch, jreg, jmul):
    a("v_lshrrev_b32 v1, 4, v0")
    a("v_lshlrev_b32 v2, 2, v1")
    a("v_and_b32 v3, 15, v0")
    a("v_xor_b32 v2, v2, v3")
    a("v_lshlrev_b32 v2, 4, v2")
    a(f"v_mul_u32_u24 v1, {pitch}, v1")
    a(f"s_mul_i32 s25, {jreg}, {jmul}")
    a(f"v_add3_u32 {dst}, v1, v2, s25")


def b128_addr(a, dst0, base_sgpr):
    a("v_and_b32 v1, 31, v0")
    a("v_lshrrev_b32 v2, 1, v1")
    a("v_and_b32 v2, 7, v2")
    a("v_lshrrev_b32 v3, 5, v0")
    a("v_xor_b32 v2, v2, v3")
    a("v_lshlrev_b32 v2, 4, v2")
    a("v_lshlrev_b32 v1, 7, v1")
    a(f"v_add3_u32 v{dst0}, v1, v2, {base_sgpr}")
    for i in range(1, 4):
        a(f"v_xor_b32 v{dst0+i}, {i*32}, v{dst0}")


def attention(a, cfg, loader, tr):
    KA, VA, Q, POOL, S, O = 4, 8, 16, 48, 80, 96
    nt = cfg.nt_kv

    def kdma(s):
        for rgh in range(2):
            for dhf in range(2):
                dma(a, "v14", "s[48:51]", s * 16384 + rgh * 8192 + dhf * 128, KR + kslot(s) * 16384 + dhf * 8192 + rgh * 4096, nt)
                tr.issue(("K", s))

    def vdma(s):
        for i in range(4):
            dma(a, "v15", "s[52:55]", s * 16384 + i * 4096, VR + vslot(s) * 16384 + i * 4096, nt)
            tr.issue(("V", s))

    def kread(s, uu):
        a(f"ds_read_b128 {vr(POOL+4*uu,4)}, v{KA+(uu&3)} offset:{kslot(s)*16384 + (uu>>2)*8192}")

    def vread(s, j):
        u, t = j >> 2, j & 3
        for rd in range(2):
            a(f"ds_read_b64_tr_b16 {vr(POOL+4*j+2*rd,2)}, v{VA+t} offset:{vslot(s)*16384 + u*4096 + rd*2048}")

    for uu in range(8):
        a(f"ds_read_b128 {vr(Q+4*uu,4)}, v3 offset:{uu*1024}")
        kread(0, uu)
    a("v_mov_b32 v12, 0")
    a("v_mov_b32 v13, 0")
    for s in range(8):
        a.comment(f"---- attention stage {s}")
        if cfg.prio:
            a("s_setprio 1")
        for uu in range(8):
            c = "0" if uu == 0 else vr(S, 16)
            a(f"v_mfma_f32_32x32x16_bf16 {vr(S,16)}, {vr(POOL+4*uu,4)}, {vr(Q+4*uu,4)}, {c}")
            vread(s, uu)
        if cfg.prio:
            a("s_setprio 0")
        for r in range(8):
            a(f"v_exp_f32 v{S+r}, v{S+r}")
        for r in range(8):
            a(f"v_add_f32 v{12+(r&1)}, v{12+(r&1)}, v{S+r}")
        for i in range(4):
            a(f"v_cvt_pk_bf16_f32 v{S+i}, v{S+2*i}, v{S+2*i+1}")

        def pv(j):
            u, t = j >> 2, j & 3
            c = "0" if (s == 0 and u == 0) else vr(O + 16 * t, 16)
            a(f"v_mfma_f32_32x32x16_bf16 {vr(O+16*t,16)}, {vr(POOL+4*j,4)}, {vr(S+8*u,4)}, {c}")
        for j in range(4):
            a(f"v_exp_f32 v{S+8+2*j}, v{S+8+2*j}")
            a(f"v_exp_f32 v{S+9+2*j}, v{S+9+2*j}")
            pv(j)
            a(f"v_add_f32 v12, v12, v{S+8+2*j}")
            a(f"v_add_f32 v13, v13, v{S+9+2*j}")
            a(f"v_cvt_pk_bf16_f32 v{S+8+j}, v{S+8+2*j}, v{S+9+2*j}")
        for j in range(4, 8):
            pv(j)
            if s < 7:
                if j + 1 == cfg.nb:
                    if loader:
                        n = tr.wait_count({("K", s + 1), ("V", s + 1)})
                        a(f"s_waitcnt vmcnt({n}) lgkmcnt(0)")
                    else:
                        a("s_waitcnt lgkmcnt(0)")
                    a("s_barrier")
                    for uu in range(j + 1):
                        kread(s + 1, uu)
                    if s == 0:
                        pass
                elif j + 1 > cfg.nb:
                    kread(s + 1, j)
        if loader and s < 7:
            if s == 0:
                vdma(3)
            if s + 4 < 8:
                kdma(s + 4)
                vdma(s + 4)


def attn_finish(a, cfg):
    O, POOL, Q = 96, 48, 16
    a("s_lshl_b32 s25, s24, 13")
    a("s_add_u32 s26, s25, 16384")
    a("s_cmp_lt_u32 s24, 4")
    a("s_cselect_b32 s25, s25, s26")
    a("s_xor_b32 s26, s25, 8192")
    a("v_lshlrev_b32 v1, 4, v0")
    a("v_add_u32 v2, s26, v1")
    a("v_add_u32 v1, s25, v1")
    a("v_add_f32 v12, v12, v13")
    a("s_lshl_b32 s25, s24, 8")
    a(f"s_add_u32 s25, s25, {LB}")
    a("v_lshl_add_u32 v3, v0, 2, s25")
    a("ds_write_b32 v3, v12")
    a("s_cmp_eq_u32 s29, 0")
    a("s_cbranch_scc1 L_x_kh0")
    for kh in (1, 0):
        if kh == 0:
            a.label("L_x_kh0")
        send = O + 32 * (1 - kh)
        keep = O + 32 * kh
        for i in range(8):
            a(f"ds_write_b128 v1, {vr(send+4*i,4)} offset:{i*1024}")
        a("s_lshl_b32 s25, s30, 9")
        a(f"s_add_u32 s25, s25, {LB}")
        a("v_and_b32 v3, 31, v0")
        a("v_lshl_add_u32 v3, v3, 2, s25")
        a("v_bfe_u32 v4, v0, 4, 1")
        a("v_lshlrev_b32 v4, 10, v4")
        a("v_lshrrev_b32 v5, 5, v0")
        a("v_lshl_add_u32 v4, v5, 8, v4")
        a("v_and_b32 v5, 15, v0")
        a("v_lshl_add_u32 v4, v5, 4, v4")
        a("s_lshl_b32 s25, s30, 11")
        a("v_add_u32 v4, s25, v4")
        a("s_waitcnt lgkmcnt(0)")
        a("s_barrier")
        a(f"ds_read2_b32 v[6:7], v3 offset0:0 offset1:32")
        a(f"ds_read2_b32 v[8:9], v3 offset0:64 offset1:96")
        for i in range(8):
            a(f"ds_read_b128 {vr(POOL+4*i,4)}, v2 offset:{i*1024}")
        a("v_add_f32 v6, v6, v7")
        a("v_add_f32 v8, v8, v9")
        a("v_add_f32 v6, v6, v8")
        a("v_rcp_f32 v6, v6")
        for tt in range(2):
            t = 2 * kh + tt
            for gp in range(2):
                base = 16 * tt + 8 * gp
                for r in range(8):
                    a(f"v_add_f32 v{keep+base+r}, v{keep+base+r}, v{POOL+base+r}")
                for r in range(8):
                    a(f"v_mul_f32 v{keep+base+r}, v{keep+base+r}, v6")
                d = Q + 4 * (2 * tt + gp)
                for i in range(4):
                    a(f"v_cvt_pk_bf16_f32 v{d+i}, v{keep+base+2*i}, v{keep+base+2*i+1}")
                a(f"s_mov_b32 s28, {t*12288 + gp*512}")
                a(f"buffer_store_dwordx4 {vr(d,4)}, v4, s[60:63], s28 offen")
        if kh == 1:
            a("s_branch L_k1_done")
    a.label("L_k1_done")


def attn_addr_setup(a):
    a("s_and_b32 s29, s24, 1")
    a("s_lshr_b32 s30, s24, 1")
    a("s_lshl_b32 s25, s29, 12")
    b128_addr(a, 4, "s25")
    a("v_bfe_u32 v1, v0, 2, 2")
    a("v_lshrrev_b32 v2, 5, v0")
    a("v_lshl_add_u32 v2, v2, 2, v1")
    a("v_lshlrev_b32 v2, 8, v2")
    a("v_lshl_add_u32 v2, v1, 6, v2")
    a("v_bfe_u32 v1, v0, 4, 1")
    a("v_lshl_add_u32 v2, v1, 5, v2")
    a("v_and_b32 v1, 3, v0")
    a("v_lshl_add_u32 v2, v1, 3, v2")
    a("s_lshl_b32 s25, s29, 13")
    a(f"s_add_u32 s25, s25, {VR}")
    a("v_add_u32 v8, s25, v2")
    for t in range(1, 4):
        a(f"v_xor_b32 v{8+t}, {t*64}, v8")
    a("s_lshl_b32 s25, s30, 13")
    a(f"s_add_u32 s25, s25, {QR}")
    a("v_lshl_add_u32 v3, v0, 4, s25")


def o_srd(a):
    a("s_lshl_b32 s25, s22, 5")
    a("s_add_u32 s25, s25, s23")
    a("s_mul_i32 s25, s25, 49152")
    srd(a, 60, 18, 19, "s25", 49152)


def k1(a, cfg, name):
    prologue(a, cfg, name)
    a("s_cmp_lt_u32 s24, 4")
    a("s_cbranch_scc1 L_qc")
    a("s_cmp_lt_u32 s24, 8")
    a("s_cbranch_scc1 L_ql")
    a("s_sub_u32 s26, s24, 8")
    a("s_lshl_b32 s27, s26, 10")
    swz8_voff(a, "v14", 256, "s26", 2048)
    swz4_voff(a, "v15", 256, "s26", 1024)
    a("s_lshl_b32 s25, s22, 5")
    a("s_add_u32 s25, s25, s23")
    a("s_lshl_b32 s25, s25, 17")
    a("s_waitcnt lgkmcnt(0)")
    srd(a, 48, 6, 7, "s25", 131072)
    srd(a, 52, 8, 9, "s25", 131072)
    tr = DmaTrack()
    nt = cfg.nt_kv

    def kdma(s):
        for rgh in range(2):
            for dhf in range(2):
                dma(a, "v14", "s[48:51]", s * 16384 + rgh * 8192 + dhf * 128, KR + kslot(s) * 16384 + dhf * 8192 + rgh * 4096, nt)
                tr.issue(("K", s))

    def vdma(s):
        for i in range(4):
            dma(a, "v15", "s[52:55]", s * 16384 + i * 4096, VR + vslot(s) * 16384 + i * 4096, nt)
            tr.issue(("V", s))
    kdma(0)
    vdma(0)
    stamp_srd(a, cfg)
    o_srd(a)
    attn_addr_setup(a)
    for i in range(10):
        a("s_barrier")
        if i == 7:
            kdma(1); vdma(1)
        if i == 8:
            kdma(2); vdma(2)
        if i == 9:
            kdma(3)
    a(f"s_waitcnt vmcnt({tr.wait_count({('K',0),('V',0)})})")
    a("s_barrier")
    attention(a, cfg, True, tr)
    a("s_branch L_fin")
    a.label("L_ql")
    a("s_sub_u32 s26, s24, 4")
    a("s_lshl_b32 s27, s26, 10")
    swz8_voff(a, "v14", 1152, "s26", 8 * 1152)
    swz4_voff(a, "v15", 8192, "s26", 4 * 8192)
    a("s_mul_i32 s25, s22, 221184")
    a("s_lshl_b32 s31, s23, 8")
    a("s_waitcnt lgkmcnt(0)")
    srd(a, 44, 4, 5, "s25", 221184)
    srd(a, 56, 10, 11, "s31", 576 * 8192 - 31 * 256)

    def xw(ks):
        sl = ks % 3
        for i in range(4):
            dma(a, "v15", "s[56:59]", ks * 64 * 8192 + i * 16 * 8192, WQR + sl * 16384 + i * 4096)
        for i in range(6):
            dma(a, "v14", "s[44:47]", i * 32 * 1152 + ks * 128, XR + sl * 24576 + i * 4096)
    xw(0); xw(1); xw(2)
    stamp_srd(a, cfg)
    o_srd(a)
    attn_addr_setup(a)
    for i in range(9):
        rem = min(8, i + 2 if i >= 1 else 2) - i
        if i == 0:
            rem = 2
        else:
            rem = min(8, i + 1) - i
        a(f"s_waitcnt vmcnt({10*rem})")
        a("s_barrier")
        if i >= 1 and i + 2 <= 8:
            xw(i + 2)
    a("s_barrier")
    a("s_barrier")
    a("s_branch L_attn")
    a.label("L_qc")
    ACC, FR = 64, 16
    a("s_and_b32 s29, s24, 1")
    a("s_lshr_b32 s30, s24, 1")
    a("s_mul_i32 s25, s30, 12288")
    a(f"s_add_u32 s25, s25, {XR}")
    b128_addr(a, 4, "s25")
    a("v_bfe_u32 v1, v0, 2, 2")
    a("v_lshrrev_b32 v2, 5, v0")
    a("v_lshl_add_u32 v2, v2, 3, v1")
    a("v_lshlrev_b32 v2, 8, v2")
    a("s_lshl_b32 s25, s29, 1")
    a("v_xor_b32 v1, s25, v1")
    a("v_lshl_add_u32 v2, v1, 6, v2")
    a("v_bfe_u32 v1, v0, 4, 1")
    a("v_lshl_add_u32 v2, v1, 5, v2")
    a("v_and_b32 v1, 1, v0")
    a("v_lshl_add_u32 v2, v1, 4, v2")
    a("v_bfe_u32 v1, v0, 1, 1")
    a("v_lshl_add_u32 v8, v1, 3, v2")
    a("v_xor_b32 v9, 64, v8")
    a("s_mul_i32 s25, s30, 24576")
    a("s_lshl_b32 s26, s29, 12")
    a("s_add_u32 s25, s25, s26")
    a(f"s_add_u32 s25, s25, {QR}")
    a("v_lshl_add_u32 v10, v0, 4, s25")
    a("s_waitcnt lgkmcnt(0)")
    stamp_srd(a, cfg)
    o_srd(a)
    if cfg.stamps:
        a("s_cmp_eq_u32 s24, 0")
        a("s_cbranch_scc0 L_nostamp0")
        a("v_mov_b32 v164, s72")
        a("v_mov_b32 v165, s73")
        a("v_mov_b32 v166, 0")
        a("s_mov_b64 exec, 1")
        a("buffer_store_dwordx2 v[164:165], v166, s[64:67], s70 offen")
        a("s_mov_b64 exec, -1")
        a.label("L_nostamp0")

    def frag_reads(g):
        ks, sub, st = g >> 2, g & 3, g & 1
        sl = ks % 3
        f = FR + 20 * st
        L = []
        for tt in range(2):
            for rd in range(2):
                L.append(f"ds_read_b64_tr_b16 {vr(f+4*tt+2*rd,2)}, v{8+tt} offset:{WQR + sl*16384 + sub*4096 + rd*1024}")
        for qq in range(3):
            L.append(f"ds_read_b128 {vr(f+8+4*qq,4)}, v{4+sub} offset:{sl*24576 + qq*4096}")
        return [L[0], L[1], L[4], L[5], L[6], L[2], L[3]]

    a("s_barrier")
    stamp(a, cfg, 1)
    for r in frag_reads(0):
        a(r)
    for g in range(36):
        st = g & 1
        f = FR + 20 * st
        nxt = frag_reads(g + 1) if g < 35 else []
        newstage = (g & 3) == 3
        if newstage:
            a("s_waitcnt lgkmcnt(0)")
        mf = []
        for tt in range(2):
            for qq in range(3):
                d = ACC + (tt * 3 + qq) * 16
                c = "0" if g == 0 else vr(d, 16)
                mf.append(f"v_mfma_f32_32x32x16_bf16 {vr(d,16)}, {vr(f+4*tt,4)}, {vr(f+8+4*qq,4)}, {c}")
        a(mf[0])
        if newstage:
            a("s_barrier")
        ri = 0
        for i in range(6):
            if i > 0:
                a(mf[i])
            k = 3 if i == 0 else 2
            for r in nxt[ri:ri + k]:
                a(r)
            ri += k
    stamp(a, cfg, 2)
    a(f"s_mov_b32 s32, {f32bits(math.log2(math.e)/math.sqrt(128.0)):#x}")
    a("s_mov_b32 s33, s32")
    n = 0
    for tt in range(2):
        for qq in range(3):
            d = ACC + (tt * 3 + qq) * 16
            for u in range(2):
                t0 = FR + 4 * (n % 8)
                n += 1
                for i in range(4):
                    a(f"v_pk_mul_f32 {vr(d+8*u+2*i,2)}, {vr(d+8*u+2*i,2)}, s[32:33]")
                for i in range(4):
                    a(f"v_cvt_pk_bf16_f32 v{t0+i}, v{d+8*u+2*i}, v{d+8*u+2*i+1}")
                a(f"ds_write_b128 v10, {vr(t0,4)} offset:{(qq*8 + 2*tt + u)*1024}")
    attn_addr_setup(a)
    a("s_waitcnt lgkmcnt(0)")
    a("s_barrier")
    a.label("L_attn")
    attention(a, cfg, False, None)
    a.label("L_fin")
    stamp(a, cfg, 3)
    attn_finish(a, cfg)
    if cfg.stamps:
        a("s_waitcnt vmcnt(0)")
    stamp(a, cfg, 4)
    a.label(f"L_end_{name}")
    a("s_endpgm")


def k2(a, cfg, name):
    prologue(a, cfg, name)
    a("s_cmp_lt_u32 s24, 4")
    a("s_cbranch_scc1 L_oc")
    a("s_sub_u32 s26, s24, 4")
    a("s_mul_i32 s27, s26, 9216")
    for i in range(9):
        a(f"v_add_u32 v1, {64*i}, v0")
        a("v_mul_u32_u24 v2, 3641, v1")
        a("v_lshrrev_b32 v2, 16, v2")
        a("v_mul_u32_u24 v3, 18, v2")
        a("v_sub_u32 v3, v1, v3")
        a("v_mul_u32_u24 v2, 1152, v2")
        a(f"v_lshl_add_u32 v{16+i}, v3, 4, v2")
    a("s_mul_i32 s25, s20, {0}".format(512 * 1152))
    a("s_mul_i32 s31, s21, 288")
    a("s_add_u32 s25, s25, s31")
    a("s_mul_i32 s31, s26, {0}".format(32 * 1152))
    a("s_waitcnt lgkmcnt(0)")
    srd(a, 44, 12, 13, "s25", 512 * 1152 - 864)
    for half in range(2):
        for i in range(9):
            a(f"s_add_u32 m0, s27, {half*8*9216 + i*1024}")
            a(f"s_add_u32 s28, s31, {half*8*32*1152}")
            a(f"buffer_load_dwordx4 v{16+i}, s[44:47], s28 offen lds")
    a("s_waitcnt vmcnt(9)")
    a("s_barrier")
    a("s_waitcnt vmcnt(0)")
    a("s_barrier")
    a("s_endpgm")
    a.label("L_oc")
    ACC, AF, BF = 56, 40, 4
    a("s_lshl_b32 s25, s22, 5")
    a("s_lshl_b32 s26, s20, 2")
    a("s_add_u32 s25, s25, s26")
    a("s_mul_i32 s25, s25, 49152")
    a("s_mul_i32 s26, s24, 3072")
    a("v_lshl_add_u32 v1, v0, 4, s26")
    a("v_lshrrev_b32 v2, 5, v0")
    a("v_lshlrev_b32 v2, 4, v2")
    a("v_bfe_u32 v3, v0, 4, 1")
    a("v_lshl_add_u32 v2, v3, 2, v2")
    a("v_bfe_u32 v3, v0, 2, 2")
    a("v_add_u32 v2, v2, v3")
    a("v_mul_u32_u24 v2, 288, v2")
    a("v_and_b32 v3, 3, v0")
    a("v_lshl_add_u32 v2, v3, 3, v2")
    a(f"v_add_u32 v3, {7*9216}, v2")
    a(f"v_add_u32 v164, {14*9216}, v2")
    a("s_waitcnt lgkmcnt(0)")
    srd(a, 60, 18, 19, "s25", 4 * 49152)
    a("s_lshl_b32 s25, s20, 3")
    a("s_add_u32 s25, s25, s22")
    a("s_lshl_b32 s25, s25, 2")
    a("s_add_u32 s25, s25, s21")
    a(f"s_mul_i32 s25, s25, {P_CU}")
    a(f"s_add_u32 s25, s25, {WS_P}")
    srd(a, 56, 18, 19, "s25", P_CU)

    def bload(k):
        f = BF + 12 * (k % 3)
        for qq in range(3):
            a(f"s_mov_b32 s28, {k*12288}")
            a(f"buffer_load_dwordx4 {vr(f+4*qq,4)}, v1, s[60:63], s28 offen offset:{qq*1024}")

    def aread(idx):
        k, nt_ = divmod(idx, 9)
        f = AF + 4 * (idx % 4)
        base, kk = (2, k) if k < 7 else ((3, k - 7) if k < 14 else (164, k - 14))
        for rd in range(2):
            a(f"ds_read_b64_tr_b16 {vr(f+2*rd,2)}, v{base} offset:{kk*9216 + rd*8*288 + nt_*32}")
    bload(0); bload(1); bload(2)
    a("s_barrier")
    for idx in range(3):
        aread(idx)
    for k in range(16):
        if k == 7:
            pass
        for nt_ in range(9):
            idx = k * 9 + nt_
            nidx = idx + 3
            if nidx == 72:
                a("s_barrier")
            if nidx < 144:
                aread(nidx)
            f = AF + 4 * (idx % 4)
            for qq in range(3):
                d = ACC + (qq * 9 + nt_) * 4
                c = "0" if k == 0 else vr(d, 4)
                a(f"v_mfma_f32_16x16x32_bf16 {vr(d,4)}, {vr(f,4)}, {vr(BF+12*(k%3)+4*qq,4)}, {c}")
        if k + 3 < 16:
            bload(k + 3)
    a("s_mul_i32 s26, s24, 14336")
    a("v_lshl_add_u32 v1, v0, 4, s26")
    tiles = []
    for qq in range(3):
        for p in range(4):
            tiles.append((qq * 9 + 2 * p, qq * 9 + 2 * p + 1))
    tiles.append((8, 17))
    tiles.append((26, None))
    for pi, (t0, t1) in enumerate(tiles):
        d = 4 + 4 * (pi % 8)
        a(f"v_cvt_pk_bf16_f32 v{d}, v{ACC+4*t0}, v{ACC+4*t0+1}")
        a(f"v_cvt_pk_bf16_f32 v{d+1}, v{ACC+4*t0+2}, v{ACC+4*t0+3}")
        if t1 is not None:
            a(f"v_cvt_pk_bf16_f32 v{d+2}, v{ACC+4*t1}, v{ACC+4*t1+1}")
            a(f"v_cvt_pk_bf16_f32 v{d+3}, v{ACC+4*t1+2}, v{ACC+4*t1+3}")
        else:
            a(f"v_mov_b32 v{d+2}, 0")
            a(f"v_mov_b32 v{d+3}, 0")
        a(f"s_mov_b32 s28, {pi*1024}")
        a(f"buffer_store_dwordx4 {vr(d,4)}, v1, s[56:59], s28 offen")
    a.label(f"L_end_{name}")
    a("s_endpgm")


def k3(a, cfg, name):
    prologue(a, cfg, name)
    a("s_mul_i32 s25, s20, 7")
    a("s_add_u32 s25, s25, s24")
    a("s_mul_i32 s26, s25, 4682")
    a("s_lshr_b32 s26, s26, 16")
    a("s_mul_i32 s27, s26, 14")
    a("s_sub_u32 s27, s25, s27")
    a("s_lshl_b32 s28, s22, 2")
    a("s_add_u32 s28, s28, s21")
    a(f"s_mul_i32 s28, s28, {P_CU}")
    a("s_lshl_b32 s29, s25, 10")
    a("s_add_u32 s28, s28, s29")
    a(f"s_add_u32 s28, s28, {WS_P}")
    a("v_lshlrev_b32 v1, 4, v0")
    a("s_waitcnt lgkmcnt(0)")
    srd(a, 56, 18, 19, "s28", 7 * 32 * P_CU + 1024)
    for g in range(8):
        a(f"s_mov_b32 s30, {g*32*P_CU}")
        a(f"buffer_load_dwordx4 {vr(16+4*g,4)}, v1, s[56:59], s30 offen")
    a("s_mul_i32 s31, s22, 221184")
    a("s_mul_i32 s30, s21, 288")
    a("s_add_u32 s31, s31, s30")
    srd(a, 60, 14, 15, "s31", 221184 - 864)
    a("s_lshr_b32 s32, s27, 2")
    a("s_and_b32 s33, s27, 3")
    a("s_lshl_b32 s33, s33, 6")
    a("s_mov_b32 s34, 32")
    a("s_cmp_eq_u32 s27, 12")
    a("s_cselect_b32 s32, 0, s32")
    a("s_cselect_b32 s33, 256, s33")
    a(f"s_cselect_b32 s34, {16*1152}, s34")
    a("s_cmp_eq_u32 s27, 13")
    a("s_cselect_b32 s32, 2, s32")
    a("s_cselect_b32 s33, 256, s33")
    a("s_cselect_b32 s34, 0x1000000, s34")
    a("s_mul_i32 s35, s26, 3")
    a("s_add_u32 s35, s35, s32")
    a(f"s_mul_i32 s35, s35, {16*1152}")
    a("s_add_u32 s35, s35, s33")
    a("v_and_b32 v2, 15, v0")
    a("v_mul_u32_u24 v2, 1152, v2")
    a("v_bfe_u32 v3, v0, 4, 1")
    a("v_mul_lo_u32 v3, v3, s34")
    a("v_lshrrev_b32 v4, 5, v0")
    a("v_lshl_add_u32 v2, v4, 4, v2")
    a("v_add3_u32 v2, v2, v3, s35")
    for g in range(8):
        for i in range(4):
            s = 16 + 4 * g + i
            if g == 0:
                a(f"v_lshlrev_b32 v{8+2*i}, 16, v{s}")
                a(f"v_and_b32 v{9+2*i}, 0xffff0000, v{s}")
            else:
                a(f"v_lshlrev_b32 v5, 16, v{s}")
                a(f"v_and_b32 v6, 0xffff0000, v{s}")
                a(f"v_add_f32 v{8+2*i}, v{8+2*i}, v5")
                a(f"v_add_f32 v{9+2*i}, v{9+2*i}, v6")
    for i in range(4):
        a(f"v_cvt_pk_bf16_f32 v{48+i}, v{8+2*i}, v{9+2*i}")
    a("v_permlane16_swap_b32 v48, v50")
    a("v_permlane16_swap_b32 v49, v51")
    a("buffer_store_dwordx4 v[48:51], v2, s[60:63], 0 offen")
    a.label(f"L_end_{name}")
    a("s_endpgm")


def descriptor(name, vg):
    return f""".amdhsa_kernel {name}
  .amdhsa_next_free_vgpr {vg}
  .amdhsa_next_free_sgpr 102
  .amdhsa_accum_offset {(vg+3)//4*4}
  .amdhsa_group_segment_fixed_size 0
  .amdhsa_kernarg_size 64
  .amdhsa_user_sgpr_count 2
  .amdhsa_user_sgpr_kernarg_segment_ptr 1
  .amdhsa_system_sgpr_workgroup_id_x 1
.end_amdhsa_kernel
"""


def build(cfg):
    a = Asm()
    a.raw(HEADER.rstrip("\n"))
    a.raw(f"; @launch kernel={KNAME} grid=(256,1,1) block=(768,1,1) lds=163840")
    a.raw("; @launch kernel=oproj_kernel grid=(256,1,1) block=(768,1,1) lds=147456")
    a.raw("; @launch kernel=reduce_kernel grid=(256,1,1) block=(448,1,1) lds=0")
    a.raw('.amdgcn_target "amdgcn-amd-amdhsa--gfx950"')
    a.raw(".text")
    k1(a, cfg, KNAME)
    print("k1 maxv", a.maxv, "instrs", a.ninstr, "nops", a.nops_inserted, file=sys.stderr)
    st = cfg.stamps
    cfg.stamps = False
    a.maxv = 0
    k2(a, cfg, "oproj_kernel")
    print("k2 maxv", a.maxv, file=sys.stderr)
    a.maxv = 0
    k3(a, cfg, "reduce_kernel")
    print("k3 maxv", a.maxv, file=sys.stderr)
    cfg.stamps = st
    a.raw('.section .rodata,"a"')
    a.raw(".p2align 6")
    a.raw(descriptor(KNAME, 168))
    a.raw(".p2align 6")
    a.raw(descriptor("oproj_kernel", 168))
    a.raw(".p2align 6")
    a.raw(descriptor("reduce_kernel", 64))
    return a.text()


if __name__ == "__main__":
    cfg = Cfg()
    out = sys.argv[1]
    for kv in sys.argv[2:]:
        k, v = kv.split("=")
        setattr(cfg, k, eval(v))
    open(out, "w").write(build(cfg))
```

```python
import re

TRANS = ("v_exp_f32", "v_log_f32", "v_rcp_f32", "v_rsq_f32", "v_sqrt_f32", "v_sin_f32", "v_cos_f32")


def split_ops(s):
    out, depth, cur = [], 0, ""
    for ch in s:
        if ch == "[":
            depth += 1
        elif ch == "]":
            depth -= 1
        if ch == "," and depth == 0:
            out.append(cur.strip())
            cur = ""
        else:
            cur += ch
    if cur.strip():
        out.append(cur.strip())
    return out


def regs_of(tok):
    tok = tok.strip()
    m = re.fullmatch(r"-?\|?([vsa])(\d+)\|?", tok)
    if m:
        return [(m.group(1), int(m.group(2)))]
    m = re.fullmatch(r"([vsa])\[(\d+):(\d+)\]", tok)
    if m:
        return [(m.group(1), i) for i in range(int(m.group(2)), int(m.group(3)) + 1)]
    if tok in ("vcc", "exec", "m0", "scc", "vcc_lo", "vcc_hi", "exec_lo", "exec_hi"):
        return [("x", tok.split("_")[0])]
    return []


class Ins:
    __slots__ = ("text", "op", "kind", "dst", "src", "srcA", "srcB", "srcC", "passes", "data", "mods", "ws")

    def __init__(self, text):
        self.text = text
        t = text.split(";")[0].strip()
        parts = t.split(None, 1)
        self.op = parts[0]
        rest = parts[1] if len(parts) > 1 else ""
        ops = split_ops(rest)
        self.mods = []
        if ops:
            last = ops[-1].split()
            ops[-1] = last[0]
            self.mods = last[1:]
        op = self.op
        R = [regs_of(o) for o in ops]
        self.dst, self.src = [], []
        self.srcA = self.srcB = self.srcC = []
        self.passes = 0
        self.data = []
        self.ws = 1
        flat = lambda l: [r for x in l for r in x]
        if op.startswith("v_mfma"):
            self.kind = "mfma"
            self.dst = R[0]
            self.srcA, self.srcB, self.srcC = R[1], R[2], R[3]
            self.src = R[1] + R[2] + R[3]
            self.passes = 8 if "32x32x16" in op else 4
        elif op.startswith("v_permlane"):
            self.kind = "permlane"
            self.dst = R[0] + R[1]
            self.src = R[0] + R[1]
        elif op.startswith("v_readfirstlane") or op.startswith("v_readlane"):
            self.kind = "readlane"
            self.dst = R[0]
            self.src = flat(R[1:])
        elif op.startswith("v_"):
            self.kind = "trans" if op.split("_e")[0] in TRANS or any(op.startswith(x) for x in TRANS) else "valu"
            if op == "v_nop":
                pass
            elif op.startswith("v_add_co") or op.startswith("v_sub_co") or op.startswith("v_addc_co"):
                self.dst = R[0] + R[1]
                self.src = flat(R[2:])
            else:
                self.dst = R[0]
                self.src = flat(R[1:])
                if op.startswith("v_fmac") or op.startswith("v_mac") or op.startswith("v_dot2c"):
                    self.src += R[0]
                if op.startswith("v_cndmask") and len(ops) == 3:
                    self.src += [("x", "vcc")]
        elif op.startswith("ds_read") or op.startswith("ds_bpermute") or op.startswith("ds_swizzle"):
            self.kind = "dsread"
            self.dst = R[0]
            self.src = flat(R[1:])
        elif op.startswith("ds_"):
            self.kind = "dswrite"
            self.src = flat(R)
        elif op.startswith("buffer_load") or op.startswith("global_load"):
            if "lds" in self.mods or "_lds_" in op:
                self.kind = "dma"
                self.src = flat(R) + [("x", "m0")]
            else:
                self.kind = "vload"
                self.dst = R[0]
                self.src = flat(R[1:])
        elif op.startswith("buffer_store") or op.startswith("global_store"):
            self.kind = "vstore"
            self.src = flat(R)
            d = R[0] if op.startswith("buffer") else R[1]
            if len(d) >= 3:
                self.data = d
        elif op.startswith("buffer_atomic") or op.startswith("global_atomic"):
            self.kind = "vatomic"
            self.src = flat(R)
            if "sc0" in self.mods:
                self.dst = R[0]
        elif op.startswith("buffer_") :
            self.kind = "vmisc"
        elif op == "s_nop":
            self.kind = "nop"
            self.ws = int(ops[0], 0) + 1
        elif op == "s_waitcnt":
            self.kind = "wait"
        elif op.startswith("s_load") or op.startswith("s_memrealtime") or op.startswith("s_memtime") or op.startswith("s_buffer_load"):
            self.kind = "smem"
            self.dst = R[0]
            self.src = flat(R[1:])
        elif op.startswith("s_cmp") or op.startswith("s_bitcmp") or op.startswith("s_cbranch") or op in ("s_branch", "s_barrier", "s_endpgm", "s_setprio", "s_sleep"):
            self.kind = "sctl"
            self.src = flat(R)
        elif op.startswith("s_"):
            self.kind = "salu"
            self.dst = R[0]
            self.src = flat(R[1:])
            if "saveexec" in op:
                self.dst = R[0] + [("x", "exec")]
        else:
            raise ValueError("unknown op " + text)


class Asm:
    def __init__(self):
        self.out = []
        self.reset_state()
        self.maxv = 0
        self.nops_inserted = 0
        self.ninstr = 0

    def reset_state(self):
        self.hist = []
        self.pos = 0
        self.lgkm = []
        self.vm = []
        self.smem_pending = False

    def raw(self, text):
        self.out.append(text)

    def comment(self, text):
        self.out.append("; " + text)

    def label(self, name, drain=True):
        if drain:
            self.drain_hazards()
        self.out.append(name + ":")
        if drain:
            assert not any(self.lgkm), f"pending ds_read at label {name}"
            assert not any(self.vm), f"pending vload at label {name}"
            self.hist = []

    def drain_hazards(self):
        need = 0
        for ins, p in self.hist:
            el = self.pos - p - 1
            req = 0
            if ins.kind == "mfma":
                req = 12 if ins.passes == 8 else 8
            elif ins.kind in ("valu", "trans", "permlane", "readlane"):
                req = 5 if any(r[0] in "sx" for r in ins.dst) else (3 if ins.op.startswith("v_dot") else 2)
            elif ins.kind == "salu" and ("x", "m0") in ins.dst:
                req = 1
            elif ins.kind == "vstore" and ins.data:
                req = 2
            need = max(need, req - el)
        if need > 0:
            self._nop(need)

    def _nop(self, n):
        while n > 0:
            k = min(n, 16)
            self.out.append(f"    s_nop {k-1}")
            self.pos += k
            self.nops_inserted += k
            n -= k

    def skip_begin(self, branch):
        self.nskip = getattr(self, "nskip", 0) + 1
        lab = f"L_sk{self.nskip}"
        self.out.append(f"    {branch} {lab}")
        self.ninstr += 1
        self.pos += 1
        self._skip = (lab, list(self.hist), self.pos, [set(x) for x in self.lgkm], [set(x) for x in self.vm])

    def skip_end(self):
        lab, hist, pos, lgkm, vm = self._skip
        self.out.append(lab + ":")
        for ins, p in self.hist:
            if p >= pos:
                assert ins.kind in ("salu", "dma", "wait", "sctl", "nop", "smem"), ins.text
        self.hist = hist
        self.pos = pos
        self.lgkm = lgkm
        self.vm = vm
        self._skip = None

    def save(self):
        return (list(self.hist), self.pos, [set(x) for x in self.lgkm], [set(x) for x in self.vm])

    def restore(self, st):
        self.hist, self.pos, self.lgkm, self.vm = list(st[0]), st[1], [set(x) for x in st[2]], [set(x) for x in st[3]]

    def forget_vm(self):
        self.vm = []

    def __call__(self, text):
        for line in text.strip().split("\n"):
            line = line.strip()
            if line:
                self.emit(line)

    def emit(self, text):
        ins = Ins(text)
        for r in ins.dst + ins.src:
            if r[0] == "v":
                self.maxv = max(self.maxv, r[1] + 1)
        if ins.op == "s_branch" or ins.op.startswith("s_cbranch"):
            self.drain_hazards()
            assert not any(x - {("x", "smem")} and ("x", "smem") not in x for x in self.lgkm), "pending ds_read at branch " + text
            assert not any(self.vm), "pending vload at branch " + text
        if ins.kind == "wait":
            self._apply_wait(text)
        else:
            self._auto_wait(ins)
            self._hazards(ins)
        self.out.append("    " + text)
        self.ninstr += 1
        self.hist.append((ins, self.pos + ins.ws - 1))
        self.pos += ins.ws
        self.hist = [(i, p) for (i, p) in self.hist if self.pos - p <= 20]
        if ins.kind == "dsread":
            self.lgkm.append(set(ins.dst))
        elif ins.kind == "dswrite":
            self.lgkm.append(set())
        elif ins.kind == "smem":
            self.smem_pending = True
            self.lgkm.append(set(ins.dst) | {("x", "smem")})
        elif ins.kind in ("vload", "vatomic"):
            self.vm.append(set(ins.dst))
        elif ins.kind in ("dma", "vstore", "vmisc"):
            self.vm.append(set())
        if ins.op in ("s_branch", "s_endpgm"):
            self.reset_state_keep_pos()

    def reset_state_keep_pos(self):
        self.hist = []
        self.lgkm = []
        self.vm = []

    def _apply_wait(self, text):
        m = re.search(r"vmcnt\((\d+)\)", text)
        if m:
            n = int(m.group(1))
            if len(self.vm) > n:
                self.vm = self.vm[len(self.vm) - n:] if n else []
        m = re.search(r"lgkmcnt\((\d+)\)", text)
        if m:
            n = int(m.group(1))
            has_smem = any(("x", "smem") in s for s in self.lgkm)
            if has_smem:
                assert n == 0, "counted lgkm wait with smem outstanding"
            if len(self.lgkm) > n:
                self.lgkm = self.lgkm[len(self.lgkm) - n:] if n else []

    def _auto_wait(self, ins):
        touched = set(ins.dst) | set(ins.src)
        need = None
        for i, s in enumerate(self.lgkm):
            if s & touched:
                need = i
        wl = wv = None
        if need is not None:
            n = len(self.lgkm) - 1 - need
            if any(("x", "smem") in s for s in self.lgkm):
                n = 0
            wl = min(n, 15)
        need = None
        for i, s in enumerate(self.vm):
            if s & touched:
                need = i
        if need is not None:
            wv = min(len(self.vm) - 1 - need, 63)
        if wl is not None or wv is not None:
            t = "s_waitcnt" + (f" vmcnt({wv})" if wv is not None else "") + (f" lgkmcnt({wl})" if wl is not None else "")
            self.emit(t)

    def _hazards(self, ins):
        need = 0
        src, dst = set(ins.src), set(ins.dst)
        isv = ins.kind in ("valu", "trans", "permlane", "readlane")
        ismem = ins.kind in ("dsread", "dswrite", "dma", "vload", "vstore", "vatomic")
        for prev, p in self.hist:
            el = self.pos - p - 1
            req = 0
            pd = set(prev.dst)
            if prev.kind == "mfma":
                big = 12 if prev.passes == 8 else 8
                if ins.kind == "mfma":
                    if pd & (set(ins.srcA) | set(ins.srcB)):
                        req = max(req, big)
                    c = set(ins.srcC)
                    if pd & c:
                        if not (ins.srcC == prev.dst and ins.passes == prev.passes):
                            req = max(req, big - 2)
                    if (pd & dst) and not (ins.dst == prev.dst and ins.passes == prev.passes):
                        req = max(req, big)
                elif isv:
                    if pd & (src | dst):
                        req = max(req, big)
                    if set(prev.srcC) & dst:
                        req = max(req, 7 if prev.passes == 8 else 3)
                elif ismem:
                    if pd & (src | dst):
                        req = max(req, big)
                    if set(prev.srcC) & dst:
                        req = max(req, 7 if prev.passes == 8 else 3)
            elif prev.kind in ("valu", "trans", "permlane", "readlane"):
                pv = {r for r in pd if r[0] == "v"}
                psg = {r for r in pd if r[0] in "sx"}
                if prev.op.startswith("v_dot") and pv & (src | dst):
                    if not (ins.op == prev.op and ins.op.startswith("v_dot2c") and not (pv & (src - dst))):
                        req = max(req, 3)
                if ins.kind == "mfma" and pv & src:
                    req = max(req, 2)
                if ins.kind == "mfma" and ("x", "exec") in psg:
                    req = max(req, 4)
                if prev.kind == "trans" and isv and ins.kind != "trans" and pv & src:
                    req = max(req, 1)
                if prev.kind == "trans" and ismem and pv & src:
                    req = max(req, 1)
                if ins.kind == "readlane" and pv & src:
                    req = max(req, 1)
                if ins.kind == "permlane" and pv & src:
                    req = max(req, 2)
                if isv and ("dpp" in ins.text or "row_" in ins.text or "quad_perm" in ins.text) and pv & src:
                    req = max(req, 2)
                if psg & src:
                    if ismem:
                        req = max(req, 5)
                    elif ins.kind == "readlane":
                        req = max(req, 4)
                    elif isv or ins.kind == "mfma":
                        req = max(req, 2)
            elif prev.kind == "salu":
                if ("x", "m0") in pd and ins.kind == "dma":
                    req = max(req, 1)
            elif prev.kind == "vstore" and prev.data:
                if set(prev.data) & dst:
                    req = max(req, 2)
            need = max(need, req - el)
        if need > 0:
            self._nop(need)

    def text(self):
        return "\n".join(self.out) + "\n"
```

```python
import sys, struct, math
sys.path.insert(0, "gen")
from asmdsl import Asm

KNAME = "standalone__mha_block_cached__near_ridge_kernel"
STAMP_OFF = 192 << 20
HEADER = open("standalone__mha_block_cached__near_ridge.s.ref").read().split("; Override")[0]

WS_O = 0
WS_P = 16 << 20
P_CU = 4 * 14 * 1024
WS_F = 32 << 20
WS_PF = WS_F + 65536
WS_BYTES = 256 << 20

U = 8192
KVB = [0, 40960, 114688, 73728]
QSL = [32768, 114688, 73728]
WSL = [0, 36864, 73728]
OSL = 110592
MISC = 159744
M_ST = MISC + 3072
M_NONCE = MISC + 3200

X_, WQ_, K_, V_, WO_, WS_, OUT_, DBG_ = "s[40:43]", "s[44:47]", "s[48:51]", "s[52:55]", "s[56:59]", "s[60:63]", "s[64:67]", "s[68:71]"
SPIN = 1 << 16


def f32bits(x):
    return struct.unpack("<I", struct.pack("<f", x))[0]


class Cfg:
    nt_kv = True
    stamps = False
    prio = True
    nb = 6
    mapping = 0
    rot = True
    force_fb = False
    pmod = " sc1"
    omod = " sc1"
    q_sched = ["wxxxwxxxw", "wxxxw", "wxxxw", "wxxxw", "wxxxwwkkkk", "", "xxxwwxxxw", "wxxxww", "kkkk", "kk", "k"]
    att_sched = None


def vr(a, n):
    return f"v[{a}:{a+n-1}]"


def stamp(a, cfg, slot):
    if cfg.stamps:
        a(f"s_memrealtime s[{80+2*slot}:{81+2*slot}]")
        a("s_waitcnt lgkmcnt(0)")


def srd(a, d, lo, hi, off_sgpr, nrec):
    if off_sgpr is None:
        a(f"s_mov_b32 s{d}, s{lo}")
        a(f"s_mov_b32 s{d+1}, s{hi}")
    else:
        a(f"s_add_u32 s{d}, s{lo}, {off_sgpr}")
        a(f"s_addc_u32 s{d+1}, s{hi}, 0")
    a(f"s_mov_b32 s{d+2}, {nrec}")
    a(f"s_mov_b32 s{d+3}, 0x20000")


class Track:
    def __init__(self):
        self.q = []

    def issue(self, tag, n=1):
        self.q += [tag] * n

    def count(self, tags):
        last = -1
        for i, t in enumerate(self.q):
            if t in tags:
                last = i
        return min(63, len(self.q) - 1 - last)


def dma(a, vo, srd_, soff, ldsoff, mods="", base="s27"):
    a(f"s_add_u32 m0, {base}, {ldsoff}")
    if isinstance(soff, tuple):
        a(f"s_add_u32 s28, {soff[0]}, {soff[1]}")
    else:
        a(f"s_mov_b32 s28, {soff}")
    a(f"buffer_load_dwordx4 {vo}, {srd_}, s28 offen{mods} lds")


def swz8_voff(a, dst, pitch, jreg, jmul):
    a("v_lshrrev_b32 v1, 4, v0")
    a(f"s_and_b32 s25, {jreg}, 1")
    a("s_lshl_b32 s25, s25, 2")
    a("v_add_u32 v1, s25, v1")
    a("v_and_b32 v2, 7, v0")
    a("v_xor_b32 v1, v1, v2")
    a("v_lshlrev_b32 v1, 4, v1")
    a("v_lshrrev_b32 v2, 3, v0")
    a(f"v_mul_u32_u24 v2, {pitch}, v2")
    a(f"s_mul_i32 s25, {jreg}, {jmul}")
    a(f"v_add3_u32 {dst}, v1, v2, s25")


def swz4_voff(a, dst, pitch, jreg, jmul):
    a("v_lshrrev_b32 v1, 4, v0")
    a("v_lshlrev_b32 v2, 2, v1")
    a("v_and_b32 v3, 15, v0")
    a("v_xor_b32 v2, v2, v3")
    a("v_lshlrev_b32 v2, 4, v2")
    a(f"v_mul_u32_u24 v1, {pitch}, v1")
    a(f"s_mul_i32 s25, {jreg}, {jmul}")
    a(f"v_add3_u32 {dst}, v1, v2, s25")


def b128_addr(a, dst0, base_sgpr):
    a("v_and_b32 v1, 31, v0")
    a("v_lshrrev_b32 v2, 1, v1")
    a("v_and_b32 v2, 7, v2")
    a("v_lshrrev_b32 v3, 5, v0")
    a("v_xor_b32 v2, v2, v3")
    a("v_lshlrev_b32 v2, 4, v2")
    a("v_lshlrev_b32 v1, 7, v1")
    a(f"v_add3_u32 v{dst0}, v1, v2, {base_sgpr}")
    for i in range(1, 4):
        a(f"v_xor_b32 v{dst0+i}, {i*32}, v{dst0}")


KA, VA, Q, POOL, S, O = 4, 8, 16, 48, 80, 96
WV = 160
NEGM = 163


def kvop(a, cfg, tr, op):
    kind, s, i = op
    nt = " nt" if cfg.nt_kv else ""
    if kind == "K":
        dma(a, "v14", K_, s * 16384 + i * 128, KVB[s % 4] + i * 8192, nt)
    else:
        dma(a, "v15", V_, s * 16384 + i * 8192, KVB[s % 4] + 16384 + i * 8192, nt)
    tr.issue((kind, s))


KVOPS = [(k, s, i) for s in range(8) for k in "KV" for i in range(2)]


def wsoff(j):
    return (f"s{72 + j // 2}", (j & 1) * 64 * 1152)


def wdma12(a, tr, j):
    for i in range(3):
        dma(a, f"v{WV+i}", WO_, wsoff(j), WSL[j % 3] + i * 1024, base="s79")
    tr.issue(("W", j), 3)


def attention(a, cfg, loader, tr, biased, nxt_op):
    def off(s):
        return KVB[s % 4] - (73728 if s % 4 >= 2 else 0)

    def kread(s, uu):
        a(f"ds_read_b128 {vr(POOL+4*uu,4)}, v{KA+(uu&3)} offset:{off(s) + (uu>>2)*8192}")

    def vread(s, j):
        u, t = j >> 2, j & 3
        for rd in range(2):
            a(f"ds_read_b64_tr_b16 {vr(POOL+4*j+2*rd,2)}, v{VA+t} offset:{off(s) + u*4096 + rd*2048}")

    def rebase(base, s):
        if s % 2 == 0 and s > 0:
            op = "v_add_u32" if s % 4 == 2 else "v_subrev_u32"
            for i in range(4):
                a(f"{op} v{base+i}, 73728, v{base+i}")

    st = {"op": nxt_op, "w": 0, "bar": 0}

    def free(op):
        k, s, i = op
        if s < 3 or (k == "K" and s == 3):
            return True
        if s == 3:
            return st["bar"] >= 1
        return st["bar"] >= s - 3

    def slot(s, pos):
        for what in cfg.att_sched.get((s, pos), ""):
            if what == "k":
                if st["op"] < len(KVOPS):
                    assert free(KVOPS[st["op"]]), (s, pos, KVOPS[st["op"]])
                    if loader:
                        kvop(a, cfg, tr, KVOPS[st["op"]])
                    st["op"] += 1
            else:
                j, i = divmod(st["w"], 3)
                assert j < 2 and st["bar"] >= 5 + j, (s, pos, j)
                dma(a, f"v{WV+i}", WO_, wsoff(j), WSL[j % 3] + i * 1024, base="s79")
                tr.issue(("W", j))
                st["w"] += 1

    for uu in range(8):
        if not biased:
            a(f"ds_read_b128 {vr(Q+4*uu,4)}, v3 offset:{uu*1024}")
        kread(0, uu)
    a("v_mov_b32 v12, 0")
    a("v_mov_b32 v13, 0")
    for s in range(8):
        a.comment(f"---- attention stage {s}")
        if biased:
            for r in range(16):
                a(f"v_mov_b32 v{S+r}, v{NEGM}")
        if cfg.prio:
            a("s_setprio 1")
        for uu in range(8):
            c = "0" if (uu == 0 and not biased) else vr(S, 16)
            a(f"v_mfma_f32_32x32x16_bf16 {vr(S,16)}, {vr(POOL+4*uu,4)}, {vr(Q+4*uu,4)}, {c}")
            vread(s, uu)
            slot(s, uu)
        if cfg.prio:
            a("s_setprio 0")
        if s < 7:
            rebase(KA, s + 1)
            rebase(VA, s + 1)
        for r in range(8):
            a(f"v_exp_f32 v{S+r}, v{S+r}")
        for r in range(8):
            a(f"v_add_f32 v{12+(r&1)}, v{12+(r&1)}, v{S+r}")
        for i in range(4):
            a(f"v_cvt_pk_bf16_f32 v{S+i}, v{S+2*i}, v{S+2*i+1}")

        def pv(j):
            u, t = j >> 2, j & 3
            c = "0" if (s == 0 and u == 0) else vr(O + 16 * t, 16)
            a(f"v_mfma_f32_32x32x16_bf16 {vr(O+16*t,16)}, {vr(POOL+4*j,4)}, {vr(S+8*u,4)}, {c}")
        for j in range(4):
            a(f"v_exp_f32 v{S+8+2*j}, v{S+8+2*j}")
            a(f"v_exp_f32 v{S+9+2*j}, v{S+9+2*j}")
            pv(j)
            a(f"v_add_f32 v12, v12, v{S+8+2*j}")
            a(f"v_add_f32 v13, v13, v{S+9+2*j}")
            a(f"v_cvt_pk_bf16_f32 v{S+8+j}, v{S+8+2*j}, v{S+9+2*j}")
            slot(s, 8 + j)
        for j in range(4, 8):
            pv(j)
            if s < 7:
                if j + 1 == cfg.nb:
                    need = 4 * (s + 2)
                    assert st["op"] >= need, (s, st["op"])
                    if loader:
                        n = tr.count({("K", s + 1), ("V", s + 1)})
                        a(f"s_waitcnt vmcnt({n}) lgkmcnt(0)")
                    else:
                        a("s_waitcnt lgkmcnt(0)")
                    a("s_barrier")
                    st["bar"] += 1
                    for uu in range(j + 1):
                        kread(s + 1, uu)
                elif j + 1 > cfg.nb:
                    kread(s + 1, j)
            slot(s, 8 + j)
    assert st["op"] == len(KVOPS) and st["w"] == 6, st


def max_pass(a, tag):
    for uu in range(8):
        a(f"ds_read_b128 {vr(Q+4*uu,4)}, v3 offset:{uu*1024}")
    a("v_and_b32 v1, 31, v0")
    a("v_lshlrev_b32 v1, 8, v1")
    a("v_lshrrev_b32 v2, 5, v0")
    a("v_lshl_add_u32 v1, v2, 4, v1")
    a(f"v_mov_b32 v{NEGM}, 0xff800000")
    a("s_mov_b32 s28, 0")
    a("s_waitcnt lgkmcnt(0)")
    a.label(f"L_max_{tag}")
    for uu in range(8):
        a(f"buffer_load_dwordx4 {vr(POOL+4*uu,4)}, v1, {K_}, s28 offen offset:{uu*32}")
    for uu in range(8):
        c = "0" if uu == 0 else vr(S, 16)
        a(f"v_mfma_f32_32x32x16_bf16 {vr(S,16)}, {vr(POOL+4*uu,4)}, {vr(Q+4*uu,4)}, {c}")
    for r in range(16):
        a(f"v_max_f32 v{NEGM}, v{NEGM}, v{S+r}")
    a("s_add_u32 s28, s28, 8192")
    a("s_cmp_lt_u32 s28, 131072")
    a(f"s_cbranch_scc1 L_max_{tag}")
    a(f"v_mov_b32 v1, v{NEGM}")
    a(f"v_permlane32_swap_b32 v1, v{NEGM}")
    a(f"v_max_f32 v{NEGM}, v{NEGM}, v1")
    a(f"v_sub_f32 v{NEGM}, 0, v{NEGM}")


def common_setup(a, cfg):
    a("s_lshl_b32 s25, s22, 5")
    a("s_add_u32 s25, s25, s23")
    a("s_lshl_b32 s26, s25, 17")
    srd(a, 48, 6, 7, "s26", 131072)
    srd(a, 52, 8, 9, "s26", 131072)


def late_setup(a, cfg):
    a("s_and_b32 s25, s21, 1")
    a("s_mul_i32 s25, s25, 576")
    srd(a, 56, 12, 13, "s25", 4096 * 1152 - 576)
    srd(a, 60, 18, 19, None, WS_BYTES)
    a(f"s_mul_i32 s72, s23, {128*1152}")
    a("s_and_b32 s25, s22, 3")
    a("s_cmp_eq_u32 s25, 3")
    a("s_cselect_b32 s25, 0, s25")
    a("s_lshr_b32 s31, s21, 1")
    a("s_mul_i32 s31, s31, 24576")
    for i in range(3):
        a(f"s_add_u32 s26, s25, {i}")
        a("s_cmp_ge_u32 s26, 3")
        a("s_cselect_b32 s39, 3, 0")
        a("s_sub_u32 s26, s26, s39")
        a("s_add_u32 s26, s26, s21")
        a("s_add_u32 s26, s26, 1")
        a("s_and_b32 s26, s26, 3")
        a("s_lshl_b32 s39, s20, 2")
        a("s_add_u32 s26, s26, s39")
        a(f"s_mul_i32 s{73+i}, s26, {128*1152}")
        a("s_lshl_b32 s39, s22, 5")
        a("s_add_u32 s26, s26, s39")
        a("s_mul_i32 s26, s26, 49152")
        a(f"s_add_u32 s{76+i}, s26, s31")
    a("s_mul_i32 s25, s24, 43")
    a("s_lshr_b32 s25, s25, 7")
    a("s_mul_i32 s26, s25, 3")
    a("s_sub_u32 s26, s24, s26")
    a("s_mul_i32 s79, s24, 3072")
    a("s_mul_i32 s26, s26, 192")
    a(f"s_mul_i32 s25, s25, {16*1152}")
    for i in range(3):
        a("v_add_u32 v1, s26, v0")
        if i:
            a(f"v_add_u32 v1, {64*i}, v1")
        a("v_mul_u32_u24 v2, 1821, v1")
        a("v_lshrrev_b32 v2, 16, v2")
        a("v_mul_u32_u24 v3, 36, v2")
        a("v_sub_u32 v1, v1, v3")
        a("v_bfe_u32 v3, v2, 2, 1")
        a("v_lshlrev_b32 v3, 1, v3")
        a("v_xor_b32 v1, v1, v3")
        a("v_mul_u32_u24 v2, 1152, v2")
        a("v_lshl_add_u32 v1, v1, 4, v2")
        a(f"v_add_u32 v{WV+i}, s25, v1")
    a("s_and_b32 s29, s24, 1")
    a("s_lshr_b32 s30, s24, 1")
    a("s_lshl_b32 s25, s29, 12")
    b128_addr(a, KA, "s25")
    a("v_bfe_u32 v1, v0, 2, 2")
    a("v_lshrrev_b32 v2, 5, v0")
    a("v_lshl_add_u32 v2, v2, 2, v1")
    a("v_lshlrev_b32 v2, 8, v2")
    a("v_lshl_add_u32 v2, v1, 6, v2")
    a("v_bfe_u32 v1, v0, 4, 1")
    a("v_lshl_add_u32 v2, v1, 5, v2")
    a("v_and_b32 v1, 3, v0")
    a("v_lshl_add_u32 v2, v1, 3, v2")
    a("s_lshl_b32 s25, s29, 13")
    a("s_add_u32 s25, s25, 16384")
    a(f"v_add_u32 v{VA}, s25, v2")
    for t in range(1, 4):
        a(f"v_xor_b32 v{VA+t}, {t*64}, v{VA}")
    a("s_add_u32 s25, s30, 11")
    a("s_add_u32 s26, s30, 14")
    a("s_cmp_lt_u32 s30, 3")
    a("s_cselect_b32 s25, s25, s26")
    a("s_cmp_eq_u32 s30, 3")
    a("s_cselect_b32 s25, 4, s25")
    a("s_lshl_b32 s25, s25, 13")
    a("v_lshl_add_u32 v3, v0, 4, s25")


def flag_store(a, soff_sgpr, t=0, mods=" sc1"):
    a(f"v_mov_b32 v{t}, s36")
    a(f"v_mov_b32 v{t+1}, s37")
    a("s_mov_b64 exec, 1")
    a(f"buffer_store_dwordx2 {vr(t,2)}, off, {WS_}, {soff_sgpr}{mods}")
    a("s_mov_b64 exec, -1")


def poll(a, tag, voff, soff_sgpr, mask, t):
    a(f"s_mov_b32 s38, {SPIN}")
    a.label(f"L_poll_{tag}")
    a(f"buffer_load_dwordx2 {vr(t,2)}, {voff}, {WS_}, {soff_sgpr} offen sc1")
    a("s_waitcnt vmcnt(0)")
    a(f"v_cmp_eq_u64 vcc, s[36:37], {vr(t,2)}")
    a(f"s_andn2_b64 s[32:33], {mask}, vcc")
    a(f"s_cbranch_scc0 L_polld_{tag}")
    a("s_sleep 2")
    a("s_sub_u32 s38, s38, 1")
    a(f"s_cbranch_scc0 L_poll_{tag}")
    a.label(f"L_polld_{tag}")


def finish(a, cfg):
    stamp(a, cfg, 4)
    a("s_cmp_ge_u32 s30, 3")
    a("s_cselect_b32 s25, 1, 0")
    a("s_cselect_b32 s26, 3, 0")
    a("s_sub_u32 s26, s30, s26")
    a("s_lshl_b32 s26, s26, 11")
    a("v_bfe_u32 v4, v0, 4, 1")
    a("v_lshlrev_b32 v4, 10, v4")
    a("v_lshrrev_b32 v5, 5, v0")
    a("v_lshl_add_u32 v4, v5, 8, v4")
    a("v_and_b32 v5, 15, v0")
    a("v_lshl_add_u32 v4, v5, 4, v4")
    a("v_add_u32 v4, s26, v4")
    a("s_lshr_b32 s31, s21, 1")
    a("s_xor_b32 s31, s31, s25")
    a("s_mul_i32 s26, s31, 24576")
    a(f"s_add_u32 s26, s26, {OSL}")
    a("v_add_u32 v5, s26, v4")
    a("s_lshl_b32 s26, s22, 5")
    a("s_add_u32 s26, s26, s23")
    a("s_lshl_b32 s35, s26, 7")
    a("s_lshl_b32 s39, s24, 3")
    a("s_add_u32 s35, s35, s39")
    a(f"s_add_u32 s35, s35, {WS_F}")
    a("s_lshl_b32 s26, s26, 2")
    a("s_lshl_b32 s25, s25, 1")
    a("s_add_u32 s26, s26, s25")
    a("s_add_u32 s26, s26, s29")
    a("s_mul_i32 s34, s26, 12288")
    a("v_add_f32 v12, v12, v13")
    a("s_lshl_b32 s25, s24, 8")
    a(f"s_add_u32 s25, s25, {MISC}")
    a("v_lshl_add_u32 v3, v0, 2, s25")
    a("ds_write_b32 v3, v12")
    a(f"s_mov_b32 s25, {f32bits(2.0**-30):#x}")
    a(f"s_mov_b32 s26, {f32bits(2.0**28):#x}")
    a("v_cmp_ge_f32 vcc, v12, s25")
    a("v_cmp_le_f32 s[32:33], v12, s26")
    a("s_and_b64 vcc, vcc, s[32:33]")
    a("s_cmp_eq_u64 vcc, -1")
    a("s_cselect_b32 s25, 0, 1")
    if cfg.force_fb:
        a("s_mov_b32 s25, 1")
    a("s_cmp_eq_u32 s3, 0")
    a("s_cselect_b32 s25, s25, 0")
    a("s_lshl_b32 s26, s24, 2")
    a(f"s_add_u32 s26, s26, {M_ST}")
    a("v_mov_b32 v6, s26")
    a("v_mov_b32 v7, s25")
    a("v_mov_b32 v8, s36")
    a("v_mov_b32 v9, s37")
    a("s_mov_b64 exec, 1")
    a("ds_write_b32 v6, v7")
    a("s_cmp_eq_u32 s24, 0")
    a("s_cselect_b64 exec, 1, 0")
    a(f"ds_write_b64 v6, v[8:9] offset:{M_NONCE - M_ST}")
    a("s_mov_b64 exec, -1")
    a("s_lshl_b32 s25, s30, 9")
    a(f"s_add_u32 s25, s25, {MISC}")
    a("v_and_b32 v3, 31, v0")
    a("v_lshl_add_u32 v3, v3, 2, s25")
    a("v_min_u32 v2, 11, v0")
    a("v_lshlrev_b32 v2, 2, v2")
    a(f"v_add_u32 v2, {M_ST}, v2")
    a(f"v_mov_b32 v1, {M_NONCE}")
    a("s_mov_b32 s32, 0x00003f80")
    a("s_mov_b32 s33, 0x3f800000")
    a("s_cmp_eq_u32 s29, 0")
    a("s_cbranch_scc1 L_x_kh0")
    for kh in (1, 0):
        if kh == 0:
            a.label("L_x_kh0")
        send = O + 32 * (1 - kh)
        keep = O + 32 * kh
        for t2 in range(2):
            for gp in range(2):
                d = Q + 4 * (2 * t2 + gp)
                b0 = send + 16 * t2 + 8 * gp
                for i in range(4):
                    a(f"v_cvt_pk_bf16_f32 v{d+i}, v{b0+2*i}, v{b0+2*i+1}")
                a(f"ds_write_b128 v5, {vr(d,4)} offset:{(1-kh)*12288 + t2*6144 + gp*512}")
        a("s_waitcnt lgkmcnt(0)")
        a("s_barrier")
        a("ds_read_b32 v10, v2")
        a("ds_read2_b32 v[6:7], v3 offset0:0 offset1:32")
        a("ds_read2_b32 v[8:9], v3 offset0:64 offset1:96")
        a("ds_read_b64 v[12:13], v1")
        for t2 in range(2):
            for gp in range(2):
                a(f"ds_read_b128 {vr(POOL+4*(2*t2+gp),4)}, v5 offset:{kh*12288 + t2*6144 + gp*512}")
        a("v_cmp_ne_u32 vcc, 0, v10")
        a("v_add_f32 v6, v6, v7")
        a("v_add_f32 v8, v8, v9")
        a("v_add_f32 v6, v6, v8")
        a("v_rcp_f32 v6, v6")
        a("v_readfirstlane_b32 s36, v12")
        a("v_readfirstlane_b32 s37, v13")
        a("s_waitcnt lgkmcnt(0)")
        a("s_cbranch_vccnz L_restart")
        a("v_mov_b32 v7, v6")
        for t2 in range(2):
            for gp in range(2):
                b0 = keep + 16 * t2 + 8 * gp
                p = POOL + 4 * (2 * t2 + gp)
                for i in range(4):
                    a(f"v_dot2c_f32_bf16 v{b0+2*i}, s32, v{p+i}")
                    a(f"v_dot2c_f32_bf16 v{b0+2*i+1}, s33, v{p+i}")
        for t2 in range(2):
            for gp in range(2):
                b0 = keep + 16 * t2 + 8 * gp
                d = Q + 4 * (2 * t2 + gp)
                for i in range(4):
                    a(f"v_pk_mul_f32 {vr(b0+2*i,2)}, {vr(b0+2*i,2)}, v[6:7]")
                for i in range(4):
                    a(f"v_cvt_pk_bf16_f32 v{d+i}, v{b0+2*i}, v{b0+2*i+1}")
                a(f"ds_write_b128 v5, {vr(d,4)} offset:{kh*12288 + t2*6144 + gp*512}")
                a(f"s_add_u32 s28, s34, {t2*6144}")
                a(f"buffer_store_dwordx4 {vr(d,4)}, v4, {WS_}, s28 offen offset:{gp*512}{cfg.omod}")
        if kh == 1:
            a("s_branch L_x_done")
    a.label("L_x_done")
    a("s_waitcnt vmcnt(7) lgkmcnt(0)")


def oproj_compute(a, cfg):
    ACC, AF, BF = 60, 36, 12
    NP = 6
    a("v_lshrrev_b32 v2, 5, v0")
    a("v_lshlrev_b32 v2, 4, v2")
    a("v_bfe_u32 v3, v0, 4, 1")
    a("v_lshl_add_u32 v2, v3, 2, v2")
    a("v_bfe_u32 v1, v0, 2, 2")
    a("v_add_u32 v2, v2, v1")
    a("v_mul_u32_u24 v2, 576, v2")
    a("v_and_b32 v1, 3, v0")
    a("v_lshl_add_u32 v2, v1, 3, v2")
    a("s_and_b32 s25, s24, 1")
    a("s_mul_i32 s26, s25, 288")
    a("v_add_u32 v2, s26, v2")
    a("v_lshlrev_b32 v3, 5, v3")
    a("v_add_u32 v4, v2, v3")
    a("v_sub_u32 v5, v2, v3")
    a("s_cmp_eq_u32 s25, 0")
    a("s_cselect_b64 vcc, -1, 0")
    a("v_cndmask_b32 v6, v5, v4, vcc")
    a("v_cndmask_b32 v5, v4, v5, vcc")
    a("v_mov_b32 v4, v6")
    a(f"v_add_u32 v6, {WSL[2]}, v4")
    a(f"v_add_u32 v7, {WSL[2]}, v5")
    a("s_lshr_b32 s25, s24, 1")
    a("s_mul_i32 s25, s25, 3072")
    a(f"s_add_u32 s25, s25, {OSL}")
    a("v_lshl_add_u32 v8, v0, 4, s25")
    a("s_barrier")
    stamp(a, cfg, 5)
    if cfg.prio:
        a("s_setprio 2")

    def aread(idx):
        k, nt_ = divmod(idx, 9)
        j = k >> 1
        f = AF + 4 * (idx % NP)
        sl = j % 3
        reg = 4 + (nt_ & 1) + (2 if sl == 2 else 0)
        base = (WSL[sl] if sl < 2 else 0) + (k & 1) * 18432 + nt_ * 32
        return [f"ds_read_b64_tr_b16 {vr(f+2*rd,2)}, v{reg} offset:{base + rd*8*576}" for rd in range(2)]

    def bread(k):
        j = k >> 1
        return [f"ds_read_b128 {vr(BF+12*(k&1)+4*qq,4)}, v8 offset:{(j%4)*12288 + (k&1)*6144 + qq*1024}" for qq in range(3)]

    pend = []
    nexta = 0
    avail = 18
    b0 = bread(0)
    r0 = aread(0)
    for x in [r0[0], r0[1], b0[0], b0[1], b0[2]]:
        a(x)
    nexta = 1
    while nexta < NP - 1:
        for x in aread(nexta):
            a(x)
        nexta += 1
    for idx in range(144):
        k, nt_ = divmod(idx, 9)
        if idx % 18 == 15 and idx + 3 < 144:
            j1 = idx // 18 + 1
            assert not pend and nexta == avail
            if j1 == 1:
                a("s_waitcnt vmcnt(4)")
            if j1 == 2:
                a("s_waitcnt vmcnt(0)")
                flag_store(a, "s35", 2, cfg.omod)
                stamp(a, cfg, 6)
            a("s_waitcnt lgkmcnt(0)")
            a("s_barrier")
            if j1 == 2:
                stamp(a, cfg, 7)
            avail += 18
            ra = aread(nexta)
            nexta += 1
            pend += ra + bread(k + 1)
        if idx % 18 == 1:
            pend += bread(k + 1)
        while nexta < avail and nexta < idx + NP:
            pend += aread(nexta)
            nexta += 1
        f = AF + 4 * (idx % NP)
        for qq in range(3):
            n = 3 if len(pend) > 4 else (2 if len(pend) > 2 else 1)
            if qq == 2:
                n = len(pend) if idx % 18 == 14 else n
            d = ACC + (qq * 9 + nt_) * 4
            c = "0" if k == 0 else vr(d, 4)
            a(f"v_mfma_f32_16x16x32_bf16 {vr(d,4)}, {vr(f,4)}, {vr(BF+12*(k&1)+4*qq,4)}, {c}")
            for x in pend[:n]:
                a(x)
            pend = pend[n:]
    stamp(a, cfg, 8)
    a("s_lshl_b32 s25, s22, 2")
    a("s_add_u32 s25, s25, s21")
    a("s_lshl_b32 s26, s25, 3")
    a("s_add_u32 s26, s26, s20")
    a("s_lshl_b32 s26, s26, 2")
    a("s_add_u32 s26, s26, s24")
    a("s_mul_i32 s26, s26, 14336")
    a(f"s_add_u32 s26, s26, {WS_P}")
    a("v_lshlrev_b32 v1, 4, v0")
    tiles = []
    for qq in range(3):
        for p in range(4):
            tiles.append((qq * 9 + 2 * p, qq * 9 + 2 * p + 1))
    tiles.append((8, 17))
    tiles.append((26, None))
    for pi, (t0, t1) in enumerate(tiles):
        d = 4 + 4 * pi
        a(f"v_cvt_pk_bf16_f32 v{d}, v{ACC+4*t0}, v{ACC+4*t0+1}")
        a(f"v_cvt_pk_bf16_f32 v{d+1}, v{ACC+4*t0+2}, v{ACC+4*t0+3}")
        if t1 is not None:
            a(f"v_cvt_pk_bf16_f32 v{d+2}, v{ACC+4*t1}, v{ACC+4*t1+1}")
            a(f"v_cvt_pk_bf16_f32 v{d+3}, v{ACC+4*t1+2}, v{ACC+4*t1+3}")
        else:
            a(f"v_mov_b32 v{d+2}, 0")
            a(f"v_mov_b32 v{d+3}, 0")
        if pi % 4 == 0:
            a(f"s_add_u32 s28, s26, {pi*1024}")
        a(f"buffer_store_dwordx4 {vr(d,4)}, v1, {WS_}, s28 offen offset:{(pi%4)*1024}{cfg.pmod}")
    a("s_lshl_b32 s25, s25, 2")
    a("s_add_u32 s25, s25, s24")
    a("s_lshl_b32 s25, s25, 3")
    a("s_add_u32 s25, s25, s20")
    a("s_lshl_b32 s25, s25, 3")
    a(f"s_add_u32 s25, s25, {WS_PF}")
    a("s_waitcnt vmcnt(0)")
    flag_store(a, "s25", 60, cfg.pmod)
    a("s_barrier")
    stamp(a, cfg, 9)


def oproj_wload(a, cfg):
    a("s_mul_i32 s25, s24, 43")
    a("s_lshr_b32 s25, s25, 7")
    a("s_cmp_ge_u32 s24, 7")
    a("s_cselect_b32 s26, 1, 0")
    a("s_sub_u32 s25, s25, s26")
    a("s_mul_i32 s26, s25, 9216")
    a("s_sub_u32 s79, s79, s26")
    a(f"s_mul_i32 s25, s25, {16*1152}")
    for i in range(3):
        a(f"v_subrev_u32 v{WV+i}, s25, v{WV+i}")
    tr = Track()
    tr.issue(("W", 1), 3)
    tr.issue("st", 4)
    for j in range(0, 8):
        if j >= 1:
            a(f"s_waitcnt vmcnt({tr.count({('W', j)})})")
        a("s_barrier")
        jn = j + 2
        if jn < 8:
            sg, lit = wsoff(jn)
            for hf in range(2):
                for i in range(3):
                    dma(a, f"v{WV+i}", WO_, (sg, lit + hf * 32 * 1152), WSL[jn % 3] + hf * 18432 + i * 1024, base="s79")
            tr.issue(("W", jn), 6)
        if j == 1:
            a(f"s_waitcnt vmcnt({tr.count({'st'})})")
            flag_store(a, "s35", 4, cfg.omod)
            tr.issue("fl")
            stamp(a, cfg, 6)


def oproj_oload(a, cfg):
    a("s_sub_u32 s26, s24, 10")
    a("s_mul_i32 s27, s26, 6144")
    a("v_lshl_add_u32 v14, v0, 4, s27")
    a(f"s_add_u32 s27, s27, {OSL}")
    a("v_lshlrev_b32 v15, 3, v0")
    a("s_lshl_b32 s25, s22, 3")
    a("s_add_u32 s25, s25, s20")
    a("s_lshl_b32 s25, s25, 9")
    a(f"s_add_u32 s31, s25, {WS_F}")
    a("s_lshr_b32 s25, s21, 1")
    a("s_mul_i32 s25, s25, 6")
    a("s_lshl_b32 s25, 0x003f003f, s25")
    a("s_mov_b32 s74, s25")
    a("s_mov_b32 s75, s25")
    a("s_lshl_b32 s25, s21, 4")
    a("s_lshl_b64 s[72:73], 0xffff, s25")
    a("s_andn2_b64 s[74:75], s[74:75], s[72:73]")
    a("s_barrier")
    a("s_waitcnt vmcnt(4)")
    a("s_barrier")
    a("s_waitcnt vmcnt(0)")
    flag_store(a, "s35", 4, cfg.omod)
    stamp(a, cfg, 6)
    poll(a, "o", "v15", "s31", "s[74:75]", 8)
    stamp(a, cfg, 7)
    tr = Track()

    def odma(j):
        for i in range(6):
            dma(a, "v14", WS_, (f"s{76 + (j-2)//2}", (j & 1) * 12288 + i * 1024), (j % 4) * 12288 + i * 1024, " sc1")
        tr.issue(j, 6)
    odma(2); odma(3); odma(4)
    for j in range(2, 8):
        a(f"s_waitcnt vmcnt({tr.count({j})})")
        a("s_barrier")
        if j + 3 < 8:
            odma(j + 3)


def reduce_(a, cfg):
    a("s_and_b32 s25, s20, 1")
    a("s_mul_i32 s25, s25, 7")
    a("s_add_u32 s25, s25, s24")
    a("s_sub_u32 s27, s25, 4")
    a("s_lshr_b32 s26, s20, 1")
    a("s_lshl_b32 s28, s22, 2")
    a("s_add_u32 s28, s28, s21")
    a("s_lshl_b32 s31, s28, 2")
    a("s_add_u32 s31, s31, s26")
    a("s_lshl_b32 s31, s31, 6")
    a(f"s_add_u32 s31, s31, {WS_PF}")
    a(f"s_mul_i32 s28, s28, {8*P_CU}")
    a("s_mul_i32 s29, s26, 14336")
    a("s_add_u32 s28, s28, s29")
    a("s_lshl_b32 s29, s27, 10")
    a("s_add_u32 s28, s28, s29")
    a(f"s_add_u32 s72, s28, {WS_P}")
    a("v_lshlrev_b32 v1, 4, v0")
    a("v_and_b32 v6, 7, v0")
    a("v_lshlrev_b32 v6, 3, v6")
    a("s_mul_i32 s25, s22, 221184")
    srd(a, 64, 14, 15, "s25", 221184)
    a("s_lshr_b32 s73, s27, 2")
    a("s_and_b32 s74, s27, 3")
    a("s_lshl_b32 s74, s74, 6")
    a("s_mov_b32 s75, 32")
    a("s_cmp_eq_u32 s27, 12")
    a("s_cselect_b32 s73, 0, s73")
    a("s_cselect_b32 s74, 256, s74")
    a(f"s_cselect_b32 s75, {16*1152}, s75")
    a("s_cmp_eq_u32 s27, 13")
    a("s_cselect_b32 s73, 2, s73")
    a("s_cselect_b32 s74, 256, s74")
    a("s_cselect_b32 s75, 0x1000000, s75")
    a("s_lshr_b32 s25, s21, 1")
    a("s_lshl_b32 s25, s25, 1")
    a("s_lshr_b32 s29, s26, 1")
    a("s_add_u32 s25, s25, s29")
    a("s_mul_i32 s25, s25, 3")
    a("s_add_u32 s25, s25, s73")
    a(f"s_mul_i32 s25, s25, {16*1152}")
    a("s_add_u32 s25, s25, s74")
    a("s_and_b32 s29, s21, 1")
    a("s_lshl_b32 s29, s29, 1")
    a("s_and_b32 s26, s26, 1")
    a("s_add_u32 s29, s29, s26")
    a("s_mul_i32 s29, s29, 288")
    a("s_add_u32 s25, s25, s29")
    a("v_and_b32 v2, 15, v0")
    a("v_mul_u32_u24 v2, 1152, v2")
    a("v_bfe_u32 v3, v0, 4, 1")
    a("v_mul_lo_u32 v3, v3, s75")
    a("v_lshrrev_b32 v4, 5, v0")
    a("v_lshl_add_u32 v2, v4, 4, v2")
    a("v_add3_u32 v2, v2, v3, s25")
    for i in range(8):
        a(f"v_mov_b32 v{8+i}, 0")
    a("s_mov_b64 s[74:75], -1")
    a("s_barrier")
    poll(a, "p", "v6", "s31", "s[74:75]", 4)
    stamp(a, cfg, 9)
    for g in range(8):
        a(f"s_add_u32 s28, s72, {g*P_CU}")
        a(f"buffer_load_dwordx4 {vr(16+4*g,4)}, v1, {WS_}, s28 offen sc1")
    a("s_mov_b32 s32, 0x00003f80")
    a("s_mov_b32 s33, 0x3f800000")
    for g in range(8):
        for i in range(4):
            s = 16 + 4 * g + i
            a(f"v_dot2c_f32_bf16 v{8+2*i}, s32, v{s}")
            a(f"v_dot2c_f32_bf16 v{9+2*i}, s33, v{s}")
    for i in range(4):
        a(f"v_cvt_pk_bf16_f32 v{48+i}, v{8+2*i}, v{9+2*i}")
    a("v_permlane16_swap_b32 v48, v50")
    a("v_permlane16_swap_b32 v49, v51")
    a(f"buffer_store_dwordx4 v[48:51], v2, {OUT_}, 0 offen")


def kernel(a, cfg, name):
    a.raw(f".globl {name}")
    a.raw(".p2align 8")
    a.raw(f".type {name},@function")
    a.raw(f"{name}:")
    a.reset_state()
    a("s_load_dwordx16 s[4:19], s[0:1], 0")
    a("s_memrealtime s[36:37]")
    a("s_cmp_ge_u32 s2, 256")
    a("s_cbranch_scc1 L_end")
    if cfg.mapping == 0:
        a("s_and_b32 s21, s2, 3")
        a("s_bfe_u32 s20, s2, 0x30003")
        a("s_and_b32 s22, s2, 4")
        a("s_lshr_b32 s25, s2, 6")
        a("s_add_u32 s22, s22, s25")
    else:
        a("s_and_b32 s22, s2, 7")
        a("s_bfe_u32 s21, s2, 0x20003")
        a("s_lshr_b32 s20, s2, 5")
    a("s_lshl_b32 s23, s20, 2")
    a("s_add_u32 s23, s23, s21")
    a("v_lshrrev_b32 v1, 6, v0")
    a("v_and_b32 v0, 63, v0")
    a("v_readfirstlane_b32 s24, v1")
    a("s_mov_b32 s3, 0")
    if cfg.stamps:
        for i in range(82, 102):
            a(f"s_mov_b32 s{i}, 0")
    a("s_waitcnt lgkmcnt(0)")
    if cfg.stamps:
        a("s_mov_b64 s[80:81], s[36:37]")
    a.label("L_start")
    a("s_cmp_lt_u32 s24, 4")
    a("s_cbranch_scc1 L_qc")
    a("s_sub_u32 s26, s24, 4")
    a("s_lshl_b32 s27, s26, 10")
    swz4_voff(a, "v13", 8192, "s26", 4 * 8192)
    a("s_lshl_b32 s31, s23, 8")
    srd(a, 44, 10, 11, "s31", 576 * 8192 - 31 * 256)
    if cfg.rot:
        a("s_and_b32 s25, s22, 3")
        a("s_lshl_b32 s25, s25, 1")
        a("s_add_u32 s25, s25, s20")
        a("s_cmp_ge_u32 s25, 9")
        a("s_cselect_b32 s31, 9, 0")
        a("s_sub_u32 s25, s25, s31")
        a("s_lshl_b32 s34, s25, 7")
        a("s_lshl_b32 s35, s25, 19")
    else:
        a("s_mov_b32 s34, 0")
        a("s_mov_b32 s35, 0")
    tr = Track()
    cnt = {"x": 0, "w": 0, "k": 0, "xs": False, "ks": False}

    def qop(c, bar):
        if c == "x":
            if not cnt["xs"]:
                swz8_voff(a, "v12", 1152, "s26", 8 * 1152)
                a("s_mul_i32 s25, s22, 221184")
                srd(a, 40, 4, 5, "s25", 221184)
                cnt["xs"] = True
            ks, i = divmod(cnt["x"], 3)
            assert ks < 9 and bar >= ks - 2, (c, ks, bar)
            dma(a, "v12", X_, ("s34", i * 64 * 1152), QSL[ks % 3] + 16384 + i * 8192)
            tr.issue(("Q", ks))
            cnt["x"] += 1
            if i == 2:
                a("s_add_u32 s34, s34, 128")
                a("s_cmp_eq_u32 s34, 1152")
                a("s_cselect_b32 s34, 0, s34")
        elif c == "w":
            ks, i = divmod(cnt["w"], 2)
            assert ks < 9 and bar >= ks - 2, (c, ks, bar)
            dma(a, "v13", WQ_, ("s35", i * 32 * 8192), QSL[ks % 3] + i * 8192)
            tr.issue(("Q", ks))
            cnt["w"] += 1
            if i == 1:
                a(f"s_add_u32 s35, s35, {64*8192}")
                a(f"s_cmp_eq_u32 s35, {576*8192}")
                a("s_cselect_b32 s35, 0, s35")
        else:
            op = KVOPS[cnt["k"]]
            assert op[1] == 0 or (bar >= 6 + op[1] and not (op[0] == "V" and op[1] >= 3) and op[1] <= 3), (op, bar)
            kvop(a, cfg, tr, op)
            cnt["k"] += 1
    for c in cfg.q_sched[0]:
        qop(c, -1)
    swz8_voff(a, "v14", 256, "s26", 2048)
    swz4_voff(a, "v15", 256, "s26", 1024)
    common_setup(a, cfg)
    for i in range(10):
        if i < 9:
            assert cnt["x"] >= 3 * (i + 1) and cnt["w"] >= 2 * (i + 1)
            a(f"s_waitcnt vmcnt({tr.count({('Q', i)})})")
        a("s_barrier")
        for c in cfg.q_sched[i + 1]:
            qop(c, i)
        if i == 0:
            late_setup(a, cfg)
    assert cnt["k"] >= 4
    a(f"s_waitcnt vmcnt({tr.count({('K',0),('V',0)})})")
    a("s_barrier")
    stamp(a, cfg, 3)
    a("s_cmp_lg_u32 s3, 0")
    a("s_cbranch_scc1 L_slow_l")
    trs = Track(); trs.q = list(tr.q)
    nop = cnt["k"]
    attention(a, cfg, True, tr, False, nop)
    a("s_branch L_fin")
    a.label("L_qc")
    ACC, FR = 64, 16
    a("s_lshl_b32 s25, s22, 5")
    srd(a, 68, 16, 17, "s25", 32)
    a("s_or_b32 s36, s36, 1")
    a("v_mov_b32 v166, s36")
    a("v_mov_b32 v167, s37")
    a("s_or_b32 s25, s23, s24")
    a("s_or_b32 s25, s25, s3")
    a("s_cmp_eq_u32 s25, 0")
    a("s_cbranch_scc0 L_nolead")
    a("s_mov_b64 exec, 1")
    a(f"buffer_store_dwordx2 v[166:167], off, {DBG_}, 0 sc0 sc1")
    a("s_mov_b64 exec, -1")
    a.label("L_nolead")
    a("s_and_b32 s29, s24, 1")
    a("s_lshr_b32 s30, s24, 1")
    a("s_mul_i32 s25, s30, 12288")
    a(f"s_add_u32 s25, s25, {QSL[0] + 16384}")
    b128_addr(a, 56, "s25")
    a("v_bfe_u32 v1, v0, 2, 2")
    a("v_lshrrev_b32 v2, 5, v0")
    a("v_lshl_add_u32 v2, v2, 3, v1")
    a("v_lshlrev_b32 v2, 8, v2")
    a("s_lshl_b32 s25, s29, 1")
    a("v_xor_b32 v1, s25, v1")
    a("v_lshl_add_u32 v2, v1, 6, v2")
    a("v_bfe_u32 v1, v0, 4, 1")
    a("v_lshl_add_u32 v2, v1, 5, v2")
    a("v_and_b32 v1, 1, v0")
    a("v_lshl_add_u32 v2, v1, 4, v2")
    a("v_bfe_u32 v1, v0, 1, 1")
    a("v_lshl_add_u32 v60, v1, 3, v2")
    a(f"v_add_u32 v60, {QSL[0]}, v60")
    a("v_xor_b32 v61, 64, v60")
    for i in range(4):
        a(f"v_add_u32 v{12+i}, {QSL[1]-QSL[0]}, v{56+i}")
    for i in range(2):
        a(f"v_add_u32 v{62+i}, {QSL[1]-QSL[0]}, v{60+i}")
    a("s_lshl_b32 s26, s29, 12")
    a("v_lshl_add_u32 v1, v0, 4, s26")
    a("s_cmp_eq_u32 s30, 0")
    for qq in range(3):
        a(f"s_cselect_b32 s25, {11+qq}, {[4,18,19][qq]}")
        a(f"v_lshl_add_u32 v{163+qq}, s25, 13, v1")
    common_setup(a, cfg)
    late_setup(a, cfg)

    def frag_reads(g):
        ks, sub, st = g >> 2, g & 3, g & 1
        sl = ks % 3
        f = FR + 20 * st
        xb, wb = (12, 62) if sl == 1 else (56, 60)
        so = QSL[sl] - QSL[0] if sl != 1 else 0
        L = []
        for tt in range(2):
            for rd in range(2):
                L.append(f"ds_read_b64_tr_b16 {vr(f+4*tt+2*rd,2)}, v{wb+tt} offset:{so + sub*4096 + rd*1024}")
        for qq in range(3):
            L.append(f"ds_read_b128 {vr(f+8+4*qq,4)}, v{xb+sub} offset:{so + qq*4096}")
        return [L[0], L[1], L[4], L[5], L[6], L[2], L[3]]

    a("s_barrier")
    stamp(a, cfg, 1)
    for r in frag_reads(0):
        a(r)
    for g in range(36):
        st = g & 1
        f = FR + 20 * st
        nxt = frag_reads(g + 1) if g < 35 else []
        newstage = (g & 3) == 3
        if newstage:
            a("s_waitcnt lgkmcnt(0)")
        mf = []
        for tt in range(2):
            for qq in range(3):
                d = ACC + (tt * 3 + qq) * 16
                c = "0" if g == 0 else vr(d, 16)
                mf.append(f"v_mfma_f32_32x32x16_bf16 {vr(d,16)}, {vr(f+4*tt,4)}, {vr(f+8+4*qq,4)}, {c}")
        a(mf[0])
        if newstage:
            a("s_barrier")
        ri = 0
        for i in range(6):
            if i > 0:
                a(mf[i])
            k = 3 if i == 0 else 2
            for r in nxt[ri:ri + k]:
                a(r)
            ri += k
        if g == 13:
            a("s_cmp_eq_u32 s24, 0")
            a("s_cselect_b64 exec, 1, 0")
            a(f"buffer_load_dwordx2 v[166:167], off, {DBG_}, 0 sc0 sc1")
            a("s_mov_b64 exec, -1")
    stamp(a, cfg, 2)
    a(f"s_mov_b32 s32, {f32bits(math.log2(math.e)/math.sqrt(128.0)):#x}")
    a("s_mov_b32 s33, s32")
    n = 0
    for tt in range(2):
        for qq in range(3):
            d = ACC + (tt * 3 + qq) * 16
            for u in range(2):
                t0 = FR + 4 * (n % 8)
                n += 1
                for i in range(4):
                    a(f"v_pk_mul_f32 {vr(d+8*u+2*i,2)}, {vr(d+8*u+2*i,2)}, s[32:33]")
                for i in range(4):
                    a(f"v_cvt_pk_bf16_f32 v{t0+i}, v{d+8*u+2*i}, v{d+8*u+2*i+1}")
                a(f"ds_write_b128 v{163+qq}, {vr(t0,4)} offset:{(2*tt + u)*1024}")
    a("v_readfirstlane_b32 s36, v166")
    a("v_readfirstlane_b32 s37, v167")
    a(f"s_mov_b32 s38, {SPIN}")
    a("s_waitcnt lgkmcnt(0)")
    a.label("L_nonce")
    a("s_cmp_lg_u32 s36, 0")
    a("s_cbranch_scc1 L_nonced")
    a(f"buffer_load_dwordx2 v[166:167], off, {DBG_}, 0 sc0 sc1")
    a("v_readfirstlane_b32 s36, v166")
    a("v_readfirstlane_b32 s37, v167")
    a("s_sub_u32 s38, s38, 1")
    a("s_cbranch_scc0 L_nonce")
    a.label("L_nonced")
    a("s_barrier")
    stamp(a, cfg, 3)
    a("s_cmp_lg_u32 s3, 0")
    a("s_cbranch_scc1 L_slow_n")
    attention(a, cfg, False, Track(), False, nop)
    a.label("L_fin")
    finish(a, cfg)
    a("s_cmp_lt_u32 s24, 4")
    a("s_cbranch_scc1 L_oc")
    a("s_cmp_lt_u32 s24, 10")
    a("s_cbranch_scc1 L_ow")
    oproj_oload(a, cfg)
    a("s_cmp_eq_u32 s24, 10")
    a("s_cbranch_scc1 L_red")
    a("s_barrier")
    a("s_branch L_out")
    a.label("L_ow")
    oproj_wload(a, cfg)
    a.label("L_red")
    reduce_(a, cfg)
    a("s_branch L_out")
    a.label("L_oc")
    oproj_compute(a, cfg)
    a.label("L_out")
    if cfg.stamps:
        a("s_waitcnt vmcnt(0)")
        stamp(a, cfg, 10)
        a("s_mul_i32 s25, s2, 12")
        a("s_add_u32 s25, s25, s24")
        a("s_lshl_b32 s25, s25, 7")
        a(f"s_add_u32 s25, s25, {STAMP_OFF}")
        a("v_mov_b32 v2, 0")
        a("s_mov_b64 exec, 1")
        for i in range(11):
            a(f"v_mov_b32 v4, s{80+2*i}")
            a(f"v_mov_b32 v5, s{81+2*i}")
            a(f"buffer_store_dwordx2 v[4:5], v2, {WS_}, s25 offen offset:{8*i}")
    a.label("L_end")
    a("s_endpgm")
    a.label("L_restart")
    a("s_waitcnt vmcnt(0) lgkmcnt(0)")
    a("s_barrier")
    a("s_mov_b32 s3, 1")
    a("s_branch L_start")
    a.label("L_slow_l")
    max_pass(a, "l")
    attention(a, cfg, True, trs, True, nop)
    a("s_branch L_fin")
    a.label("L_slow_n")
    max_pass(a, "n")
    attention(a, cfg, False, Track(), True, nop)
    a("s_branch L_fin")


def descriptor(name, vg):
    return f""".amdhsa_kernel {name}
  .amdhsa_next_free_vgpr {vg}
  .amdhsa_next_free_sgpr 102
  .amdhsa_accum_offset {(vg+3)//4*4}
  .amdhsa_group_segment_fixed_size 0
  .amdhsa_kernarg_size 64
  .amdhsa_user_sgpr_count 2
  .amdhsa_user_sgpr_kernarg_segment_ptr 1
  .amdhsa_system_sgpr_workgroup_id_x 1
.end_amdhsa_kernel
"""


def build(cfg):
    a = Asm()
    a.raw(HEADER.rstrip("\n"))
    a.raw("; @launch grid=(256,1,1) block=(768,1,1) lds=163840")
    a.raw('.amdgcn_target "amdgcn-amd-amdhsa--gfx950"')
    a.raw(".text")
    kernel(a, cfg, KNAME)
    print("maxv", a.maxv, "instrs", a.ninstr, "nops", a.nops_inserted, file=sys.stderr)
    a.raw('.section .rodata,"a"')
    a.raw(".p2align 6")
    a.raw(descriptor(KNAME, 168))
    return a.text()


if __name__ == "__main__":
    cfg = Cfg()
    out = sys.argv[1]
    for kv in sys.argv[2:]:
        k, v = kv.split("=")
        setattr(cfg, k, eval(v))
    if cfg.att_sched is None:
        d = {}
        pos = {0: [1, 6, 14], 1: [1, 5, 10, 14], 2: [1, 6, 14], 3: [1, 5, 10, 14], 4: [1, 6, 14], 5: [1, 5, 10, 14]}
        for st_, pl in pos.items():
            for p_ in pl:
                d[(st_, p_)] = "k"
        for p_ in (1, 6, 14):
            d[(6, p_)] = "w"
        for p_ in (1, 4, 7):
            d[(7, p_)] = "w"
        cfg.att_sched = d
    open(out, "w").write(build(cfg))
```

```python
import sys, struct, math
sys.path.insert(0, "gen")
from asmdsl import Asm

KNAME = "standalone__mha_block_cached__near_ridge_kernel"
STAMP_OFF = 192 << 20
HEADER = open("standalone__mha_block_cached__near_ridge.s.ref").read().split("; Override")[0]

WS_O = 0
WS_P = 16 << 20
P_CU = 4 * 14 * 1024
WS_F = 32 << 20
WS_PF = WS_F + 65536
WS_BYTES = 256 << 20

U = 8192
KVB = [0, 40960, 114688, 73728]
QSL = [32768, 114688, 73728]
WSL = [0, 36864, 73728]
OSL = 110592
MISC = 159744
M_ST = MISC + 3072
M_NONCE = MISC + 3200

X_, WQ_, K_, V_, WO_, WS_, OUT_, DBG_ = "s[40:43]", "s[44:47]", "s[48:51]", "s[52:55]", "s[56:59]", "s[60:63]", "s[64:67]", "s[68:71]"
SPIN = 1 << 16


def f32bits(x):
    return struct.unpack("<I", struct.pack("<f", x))[0]


class Cfg:
    nt_kv = True
    stamps = False
    prio = True
    nb = 6
    mapping = 0
    rot = True
    force_fb = False
    pmod = " sc1"
    omod = " sc1"
    prd = " sc1"
    ordm = " sc1"
    q_sched = ["wxxxwxxxw", "wxxxw", "wxxxw", "wxxxw", "wxxxwwkkkk", "", "xxxwwxxxw", "wxxxww", "kkkk", "kk", "k"]
    att_sched = None


def vr(a, n):
    return f"v[{a}:{a+n-1}]"


def stamp(a, cfg, slot):
    if cfg.stamps:
        a(f"s_memrealtime s[{80+2*slot}:{81+2*slot}]")
        a("s_waitcnt lgkmcnt(0)")


def srd(a, d, lo, hi, off_sgpr, nrec):
    if off_sgpr is None:
        a(f"s_mov_b32 s{d}, s{lo}")
        a(f"s_mov_b32 s{d+1}, s{hi}")
    else:
        a(f"s_add_u32 s{d}, s{lo}, {off_sgpr}")
        a(f"s_addc_u32 s{d+1}, s{hi}, 0")
    a(f"s_mov_b32 s{d+2}, {nrec}")
    a(f"s_mov_b32 s{d+3}, 0x20000")


class Track:
    def __init__(self):
        self.q = []

    def issue(self, tag, n=1):
        self.q += [tag] * n

    def count(self, tags):
        last = -1
        for i, t in enumerate(self.q):
            if t in tags:
                last = i
        return min(63, len(self.q) - 1 - last)


def dma(a, vo, srd_, soff, ldsoff, mods="", base="s27"):
    a(f"s_add_u32 m0, {base}, {ldsoff}")
    if isinstance(soff, tuple):
        a(f"s_add_u32 s28, {soff[0]}, {soff[1]}")
    else:
        a(f"s_mov_b32 s28, {soff}")
    a(f"buffer_load_dwordx4 {vo}, {srd_}, s28 offen{mods} lds")


def swz8_voff(a, dst, pitch, jreg, jmul):
    a("v_lshrrev_b32 v1, 4, v0")
    a(f"s_and_b32 s25, {jreg}, 1")
    a("s_lshl_b32 s25, s25, 2")
    a("v_add_u32 v1, s25, v1")
    a("v_and_b32 v2, 7, v0")
    a("v_xor_b32 v1, v1, v2")
    a("v_lshlrev_b32 v1, 4, v1")
    a("v_lshrrev_b32 v2, 3, v0")
    a(f"v_mul_u32_u24 v2, {pitch}, v2")
    a(f"s_mul_i32 s25, {jreg}, {jmul}")
    a(f"v_add3_u32 {dst}, v1, v2, s25")


def swz4_voff(a, dst, pitch, jreg, jmul):
    a("v_lshrrev_b32 v1, 4, v0")
    a("v_lshlrev_b32 v2, 2, v1")
    a("v_and_b32 v3, 15, v0")
    a("v_xor_b32 v2, v2, v3")
    a("v_lshlrev_b32 v2, 4, v2")
    a(f"v_mul_u32_u24 v1, {pitch}, v1")
    a(f"s_mul_i32 s25, {jreg}, {jmul}")
    a(f"v_add3_u32 {dst}, v1, v2, s25")


def b128_addr(a, dst0, base_sgpr):
    a("v_and_b32 v1, 31, v0")
    a("v_lshrrev_b32 v2, 1, v1")
    a("v_and_b32 v2, 7, v2")
    a("v_lshrrev_b32 v3, 5, v0")
    a("v_xor_b32 v2, v2, v3")
    a("v_lshlrev_b32 v2, 4, v2")
    a("v_lshlrev_b32 v1, 7, v1")
    a(f"v_add3_u32 v{dst0}, v1, v2, {base_sgpr}")
    for i in range(1, 4):
        a(f"v_xor_b32 v{dst0+i}, {i*32}, v{dst0}")


KA, VA, Q, POOL, S, O = 4, 8, 16, 48, 80, 96
WV = 160
NEGM = 163


def kvop(a, cfg, tr, op):
    kind, s, i = op
    nt = " nt" if cfg.nt_kv else ""
    if kind == "K":
        dma(a, "v14", K_, s * 16384 + i * 128, KVB[s % 4] + i * 8192, nt)
    else:
        dma(a, "v15", V_, s * 16384 + i * 8192, KVB[s % 4] + 16384 + i * 8192, nt)
    tr.issue((kind, s))


KVOPS = [(k, s, i) for s in range(8) for k in "KV" for i in range(2)]


def wsoff(j):
    return (f"s{72 + j // 2}", (j & 1) * 64 * 1152)


def wdma12(a, tr, j):
    for i in range(3):
        dma(a, f"v{WV+i}", WO_, wsoff(j), WSL[j % 3] + i * 1024, base="s79")
    tr.issue(("W", j), 3)


def attention(a, cfg, loader, tr, biased, nxt_op):
    def off(s):
        return KVB[s % 4] - (73728 if s % 4 >= 2 else 0)

    def kread(s, uu):
        a(f"ds_read_b128 {vr(POOL+4*uu,4)}, v{KA+(uu&3)} offset:{off(s) + (uu>>2)*8192}")

    def vread(s, j):
        u, t = j >> 2, j & 3
        for rd in range(2):
            a(f"ds_read_b64_tr_b16 {vr(POOL+4*j+2*rd,2)}, v{VA+t} offset:{off(s) + u*4096 + rd*2048}")

    def rebase(base, s):
        if s % 2 == 0 and s > 0:
            op = "v_add_u32" if s % 4 == 2 else "v_subrev_u32"
            for i in range(4):
                a(f"{op} v{base+i}, 73728, v{base+i}")

    st = {"op": nxt_op, "w": 0, "bar": 0}

    def free(op):
        k, s, i = op
        if s < 3 or (k == "K" and s == 3):
            return True
        if s == 3:
            return st["bar"] >= 1
        return st["bar"] >= s - 3

    def slot(s, pos):
        for what in cfg.att_sched.get((s, pos), ""):
            if what == "k":
                if st["op"] < len(KVOPS):
                    assert free(KVOPS[st["op"]]), (s, pos, KVOPS[st["op"]])
                    if loader:
                        kvop(a, cfg, tr, KVOPS[st["op"]])
                    st["op"] += 1
            else:
                j, i = divmod(st["w"], 3)
                assert j < 2 and st["bar"] >= 5 + j, (s, pos, j)
                dma(a, f"v{WV+i}", WO_, wsoff(j), WSL[j % 3] + i * 1024, base="s79")
                tr.issue(("W", j))
                st["w"] += 1

    for uu in range(8):
        if not biased:
            a(f"ds_read_b128 {vr(Q+4*uu,4)}, v3 offset:{uu*1024}")
        kread(0, uu)
    a("v_mov_b32 v12, 0")
    a("v_mov_b32 v13, 0")
    for s in range(8):
        a.comment(f"---- attention stage {s}")
        if biased:
            for r in range(16):
                a(f"v_mov_b32 v{S+r}, v{NEGM}")
        if cfg.prio:
            a("s_setprio 1")
        for uu in range(8):
            c = "0" if (uu == 0 and not biased) else vr(S, 16)
            a(f"v_mfma_f32_32x32x16_bf16 {vr(S,16)}, {vr(POOL+4*uu,4)}, {vr(Q+4*uu,4)}, {c}")
            vread(s, uu)
            slot(s, uu)
        if cfg.prio:
            a("s_setprio 0")
        if s < 7:
            rebase(KA, s + 1)
            rebase(VA, s + 1)
        for r in range(8):
            a(f"v_exp_f32 v{S+r}, v{S+r}")
        for r in range(8):
            a(f"v_add_f32 v{12+(r&1)}, v{12+(r&1)}, v{S+r}")
        for i in range(4):
            a(f"v_cvt_pk_bf16_f32 v{S+i}, v{S+2*i}, v{S+2*i+1}")

        def pv(j):
            u, t = j >> 2, j & 3
            c = "0" if (s == 0 and u == 0) else vr(O + 16 * t, 16)
            a(f"v_mfma_f32_32x32x16_bf16 {vr(O+16*t,16)}, {vr(POOL+4*j,4)}, {vr(S+8*u,4)}, {c}")
        for j in range(4):
            a(f"v_exp_f32 v{S+8+2*j}, v{S+8+2*j}")
            a(f"v_exp_f32 v{S+9+2*j}, v{S+9+2*j}")
            pv(j)
            a(f"v_add_f32 v12, v12, v{S+8+2*j}")
            a(f"v_add_f32 v13, v13, v{S+9+2*j}")
            a(f"v_cvt_pk_bf16_f32 v{S+8+j}, v{S+8+2*j}, v{S+9+2*j}")
            slot(s, 8 + j)
        for j in range(4, 8):
            pv(j)
            if s < 7:
                if j + 1 == cfg.nb:
                    need = 4 * (s + 2)
                    assert st["op"] >= need, (s, st["op"])
                    if loader:
                        n = tr.count({("K", s + 1), ("V", s + 1)})
                        a(f"s_waitcnt vmcnt({n}) lgkmcnt(0)")
                    else:
                        a("s_waitcnt lgkmcnt(0)")
                    a("s_barrier")
                    st["bar"] += 1
                    for uu in range(j + 1):
                        kread(s + 1, uu)
                elif j + 1 > cfg.nb:
                    kread(s + 1, j)
            slot(s, 8 + j)
    assert st["op"] == len(KVOPS) and st["w"] == 6, st


def max_pass(a, tag):
    for uu in range(8):
        a(f"ds_read_b128 {vr(Q+4*uu,4)}, v3 offset:{uu*1024}")
    a("v_and_b32 v1, 31, v0")
    a("v_lshlrev_b32 v1, 8, v1")
    a("v_lshrrev_b32 v2, 5, v0")
    a("v_lshl_add_u32 v1, v2, 4, v1")
    a(f"v_mov_b32 v{NEGM}, 0xff800000")
    a("s_mov_b32 s28, 0")
    a("s_waitcnt lgkmcnt(0)")
    a.label(f"L_max_{tag}")
    for uu in range(8):
        a(f"buffer_load_dwordx4 {vr(POOL+4*uu,4)}, v1, {K_}, s28 offen offset:{uu*32}")
    for uu in range(8):
        c = "0" if uu == 0 else vr(S, 16)
        a(f"v_mfma_f32_32x32x16_bf16 {vr(S,16)}, {vr(POOL+4*uu,4)}, {vr(Q+4*uu,4)}, {c}")
    for r in range(16):
        a(f"v_max_f32 v{NEGM}, v{NEGM}, v{S+r}")
    a("s_add_u32 s28, s28, 8192")
    a("s_cmp_lt_u32 s28, 131072")
    a(f"s_cbranch_scc1 L_max_{tag}")
    a(f"v_mov_b32 v1, v{NEGM}")
    a(f"v_permlane32_swap_b32 v1, v{NEGM}")
    a(f"v_max_f32 v{NEGM}, v{NEGM}, v1")
    a(f"v_sub_f32 v{NEGM}, 0, v{NEGM}")


def common_setup(a, cfg):
    a("s_lshl_b32 s25, s22, 5")
    a("s_add_u32 s25, s25, s23")
    a("s_lshl_b32 s26, s25, 17")
    srd(a, 48, 6, 7, "s26", 131072)
    srd(a, 52, 8, 9, "s26", 131072)


def late_setup(a, cfg):
    a("s_and_b32 s25, s21, 1")
    a("s_mul_i32 s25, s25, 576")
    srd(a, 56, 12, 13, "s25", 4096 * 1152 - 576)
    srd(a, 60, 18, 19, None, WS_BYTES)
    a(f"s_mul_i32 s72, s23, {128*1152}")
    a("s_and_b32 s25, s22, 3")
    a("s_cmp_eq_u32 s25, 3")
    a("s_cselect_b32 s25, 0, s25")
    a("s_lshr_b32 s31, s21, 1")
    a("s_mul_i32 s31, s31, 24576")
    for i in range(3):
        a(f"s_add_u32 s26, s25, {i}")
        a("s_cmp_ge_u32 s26, 3")
        a("s_cselect_b32 s39, 3, 0")
        a("s_sub_u32 s26, s26, s39")
        a("s_add_u32 s26, s26, s21")
        a("s_add_u32 s26, s26, 1")
        a("s_and_b32 s26, s26, 3")
        a("s_lshl_b32 s39, s20, 2")
        a("s_add_u32 s26, s26, s39")
        a(f"s_mul_i32 s{73+i}, s26, {128*1152}")
        a("s_lshl_b32 s39, s22, 5")
        a("s_add_u32 s26, s26, s39")
        a("s_mul_i32 s26, s26, 49152")
        a(f"s_add_u32 s{76+i}, s26, s31")
    a("s_mul_i32 s25, s24, 43")
    a("s_lshr_b32 s25, s25, 7")
    a("s_mul_i32 s26, s25, 3")
    a("s_sub_u32 s26, s24, s26")
    a("s_mul_i32 s79, s24, 3072")
    a("s_mul_i32 s26, s26, 192")
    a(f"s_mul_i32 s25, s25, {16*1152}")
    for i in range(3):
        a("v_add_u32 v1, s26, v0")
        if i:
            a(f"v_add_u32 v1, {64*i}, v1")
        a("v_mul_u32_u24 v2, 1821, v1")
        a("v_lshrrev_b32 v2, 16, v2")
        a("v_mul_u32_u24 v3, 36, v2")
        a("v_sub_u32 v1, v1, v3")
        a("v_bfe_u32 v3, v2, 2, 1")
        a("v_lshlrev_b32 v3, 1, v3")
        a("v_xor_b32 v1, v1, v3")
        a("v_mul_u32_u24 v2, 1152, v2")
        a("v_lshl_add_u32 v1, v1, 4, v2")
        a(f"v_add_u32 v{WV+i}, s25, v1")
    a("s_and_b32 s29, s24, 1")
    a("s_lshr_b32 s30, s24, 1")
    a("s_lshl_b32 s25, s29, 12")
    b128_addr(a, KA, "s25")
    a("v_bfe_u32 v1, v0, 2, 2")
    a("v_lshrrev_b32 v2, 5, v0")
    a("v_lshl_add_u32 v2, v2, 2, v1")
    a("v_lshlrev_b32 v2, 8, v2")
    a("v_lshl_add_u32 v2, v1, 6, v2")
    a("v_bfe_u32 v1, v0, 4, 1")
    a("v_lshl_add_u32 v2, v1, 5, v2")
    a("v_and_b32 v1, 3, v0")
    a("v_lshl_add_u32 v2, v1, 3, v2")
    a("s_lshl_b32 s25, s29, 13")
    a("s_add_u32 s25, s25, 16384")
    a(f"v_add_u32 v{VA}, s25, v2")
    for t in range(1, 4):
        a(f"v_xor_b32 v{VA+t}, {t*64}, v{VA}")
    a("s_add_u32 s25, s30, 11")
    a("s_add_u32 s26, s30, 14")
    a("s_cmp_lt_u32 s30, 3")
    a("s_cselect_b32 s25, s25, s26")
    a("s_cmp_eq_u32 s30, 3")
    a("s_cselect_b32 s25, 4, s25")
    a("s_lshl_b32 s25, s25, 13")
    a("v_lshl_add_u32 v3, v0, 4, s25")


def flag_store(a, soff_sgpr, t=0, mods=" sc1"):
    a(f"v_mov_b32 v{t}, s36")
    a(f"v_mov_b32 v{t+1}, s37")
    a("s_mov_b64 exec, 1")
    a(f"buffer_store_dwordx2 {vr(t,2)}, off, {WS_}, {soff_sgpr}{mods}")
    a("s_mov_b64 exec, -1")


def poll(a, tag, voff, soff_sgpr, mask, t):
    a(f"s_mov_b32 s38, {SPIN}")
    a.label(f"L_poll_{tag}")
    a(f"buffer_load_dwordx2 {vr(t,2)}, {voff}, {WS_}, {soff_sgpr} offen sc1")
    a("s_waitcnt vmcnt(0)")
    a(f"v_cmp_eq_u64 vcc, s[36:37], {vr(t,2)}")
    a(f"s_andn2_b64 s[32:33], {mask}, vcc")
    a(f"s_cbranch_scc0 L_polld_{tag}")
    a("s_sleep 2")
    a("s_sub_u32 s38, s38, 1")
    a(f"s_cbranch_scc0 L_poll_{tag}")
    a.label(f"L_polld_{tag}")


def finish(a, cfg):
    stamp(a, cfg, 4)
    a("s_cmp_ge_u32 s30, 3")
    a("s_cselect_b32 s25, 1, 0")
    a("s_cselect_b32 s26, 3, 0")
    a("s_sub_u32 s26, s30, s26")
    a("s_lshl_b32 s26, s26, 11")
    a("v_bfe_u32 v4, v0, 4, 1")
    a("v_lshlrev_b32 v4, 10, v4")
    a("v_lshrrev_b32 v5, 5, v0")
    a("v_lshl_add_u32 v4, v5, 8, v4")
    a("v_and_b32 v5, 15, v0")
    a("v_lshl_add_u32 v4, v5, 4, v4")
    a("v_add_u32 v4, s26, v4")
    a("s_lshr_b32 s31, s21, 1")
    a("s_xor_b32 s31, s31, s25")
    a("s_mul_i32 s26, s31, 24576")
    a(f"s_add_u32 s26, s26, {OSL}")
    a("v_add_u32 v5, s26, v4")
    a("s_lshl_b32 s26, s22, 5")
    a("s_add_u32 s26, s26, s23")
    a("s_lshl_b32 s35, s26, 7")
    a("s_lshl_b32 s39, s24, 3")
    a("s_add_u32 s35, s35, s39")
    a(f"s_add_u32 s35, s35, {WS_F}")
    a("s_lshl_b32 s26, s26, 2")
    a("s_lshl_b32 s25, s25, 1")
    a("s_add_u32 s26, s26, s25")
    a("s_add_u32 s26, s26, s29")
    a("s_mul_i32 s34, s26, 12288")
    a("v_add_f32 v12, v12, v13")
    a("s_lshl_b32 s25, s24, 8")
    a(f"s_add_u32 s25, s25, {MISC}")
    a("v_lshl_add_u32 v3, v0, 2, s25")
    a("ds_write_b32 v3, v12")
    a(f"s_mov_b32 s25, {f32bits(2.0**-30):#x}")
    a(f"s_mov_b32 s26, {f32bits(2.0**28):#x}")
    a("v_cmp_ge_f32 vcc, v12, s25")
    a("v_cmp_le_f32 s[32:33], v12, s26")
    a("s_and_b64 vcc, vcc, s[32:33]")
    a("s_cmp_eq_u64 vcc, -1")
    a("s_cselect_b32 s25, 0, 1")
    if cfg.force_fb:
        a("s_mov_b32 s25, 1")
    a("s_cmp_eq_u32 s3, 0")
    a("s_cselect_b32 s25, s25, 0")
    a("s_lshl_b32 s26, s24, 2")
    a(f"s_add_u32 s26, s26, {M_ST}")
    a("v_mov_b32 v6, s26")
    a("v_mov_b32 v7, s25")
    a("v_mov_b32 v8, s36")
    a("v_mov_b32 v9, s37")
    a("s_mov_b64 exec, 1")
    a("ds_write_b32 v6, v7")
    a("s_cmp_eq_u32 s24, 0")
    a("s_cselect_b64 exec, 1, 0")
    a(f"ds_write_b64 v6, v[8:9] offset:{M_NONCE - M_ST}")
    a("s_mov_b64 exec, -1")
    a("s_lshl_b32 s25, s30, 9")
    a(f"s_add_u32 s25, s25, {MISC}")
    a("v_and_b32 v3, 31, v0")
    a("v_lshl_add_u32 v3, v3, 2, s25")
    a("v_min_u32 v2, 11, v0")
    a("v_lshlrev_b32 v2, 2, v2")
    a(f"v_add_u32 v2, {M_ST}, v2")
    a(f"v_mov_b32 v1, {M_NONCE}")
    a("s_mov_b32 s32, 0x00003f80")
    a("s_mov_b32 s33, 0x3f800000")
    a("s_cmp_eq_u32 s29, 0")
    a("s_cbranch_scc1 L_x_kh0")
    for kh in (1, 0):
        if kh == 0:
            a.label("L_x_kh0")
        send = O + 32 * (1 - kh)
        keep = O + 32 * kh
        for t2 in range(2):
            for gp in range(2):
                d = Q + 4 * (2 * t2 + gp)
                b0 = send + 16 * t2 + 8 * gp
                for i in range(4):
                    a(f"v_cvt_pk_bf16_f32 v{d+i}, v{b0+2*i}, v{b0+2*i+1}")
                a(f"ds_write_b128 v5, {vr(d,4)} offset:{(1-kh)*12288 + t2*6144 + gp*512}")
        a("s_waitcnt lgkmcnt(0)")
        a("s_barrier")
        a("ds_read_b32 v10, v2")
        a("ds_read2_b32 v[6:7], v3 offset0:0 offset1:32")
        a("ds_read2_b32 v[8:9], v3 offset0:64 offset1:96")
        a("ds_read_b64 v[12:13], v1")
        for t2 in range(2):
            for gp in range(2):
                a(f"ds_read_b128 {vr(POOL+4*(2*t2+gp),4)}, v5 offset:{kh*12288 + t2*6144 + gp*512}")
        a("v_cmp_ne_u32 vcc, 0, v10")
        a("v_add_f32 v6, v6, v7")
        a("v_add_f32 v8, v8, v9")
        a("v_add_f32 v6, v6, v8")
        a("v_rcp_f32 v6, v6")
        a("v_readfirstlane_b32 s36, v12")
        a("v_readfirstlane_b32 s37, v13")
        a("s_waitcnt lgkmcnt(0)")
        a("s_cbranch_vccnz L_restart")
        a("v_mov_b32 v7, v6")
        for t2 in range(2):
            for gp in range(2):
                b0 = keep + 16 * t2 + 8 * gp
                p = POOL + 4 * (2 * t2 + gp)
                for i in range(4):
                    a(f"v_dot2c_f32_bf16 v{b0+2*i}, s32, v{p+i}")
                    a(f"v_dot2c_f32_bf16 v{b0+2*i+1}, s33, v{p+i}")
        for t2 in range(2):
            for gp in range(2):
                b0 = keep + 16 * t2 + 8 * gp
                d = Q + 4 * (2 * t2 + gp)
                for i in range(4):
                    a(f"v_pk_mul_f32 {vr(b0+2*i,2)}, {vr(b0+2*i,2)}, v[6:7]")
                for i in range(4):
                    a(f"v_cvt_pk_bf16_f32 v{d+i}, v{b0+2*i}, v{b0+2*i+1}")
                a(f"ds_write_b128 v5, {vr(d,4)} offset:{kh*12288 + t2*6144 + gp*512}")
                a(f"s_add_u32 s28, s34, {t2*6144}")
                a(f"buffer_store_dwordx4 {vr(d,4)}, v4, {WS_}, s28 offen offset:{gp*512}{cfg.omod}")
        if kh == 1:
            a("s_branch L_x_done")
    a.label("L_x_done")
    a("s_waitcnt vmcnt(7) lgkmcnt(0)")


def oproj_compute(a, cfg):
    ACC, AF, BF = 60, 36, 12
    NP = 6
    a("v_lshrrev_b32 v2, 5, v0")
    a("v_lshlrev_b32 v2, 4, v2")
    a("v_bfe_u32 v3, v0, 4, 1")
    a("v_lshl_add_u32 v2, v3, 2, v2")
    a("v_bfe_u32 v1, v0, 2, 2")
    a("v_add_u32 v2, v2, v1")
    a("v_mul_u32_u24 v2, 576, v2")
    a("v_and_b32 v1, 3, v0")
    a("v_lshl_add_u32 v2, v1, 3, v2")
    a("s_and_b32 s25, s24, 1")
    a("s_mul_i32 s26, s25, 288")
    a("v_add_u32 v2, s26, v2")
    a("v_lshlrev_b32 v3, 5, v3")
    a("v_add_u32 v4, v2, v3")
    a("v_sub_u32 v5, v2, v3")
    a("s_cmp_eq_u32 s25, 0")
    a("s_cselect_b64 vcc, -1, 0")
    a("v_cndmask_b32 v6, v5, v4, vcc")
    a("v_cndmask_b32 v5, v4, v5, vcc")
    a("v_mov_b32 v4, v6")
    a(f"v_add_u32 v6, {WSL[2]}, v4")
    a(f"v_add_u32 v7, {WSL[2]}, v5")
    a("s_lshr_b32 s25, s24, 1")
    a("s_mul_i32 s25, s25, 3072")
    a(f"s_add_u32 s25, s25, {OSL}")
    a("v_lshl_add_u32 v8, v0, 4, s25")
    a("s_barrier")
    stamp(a, cfg, 5)
    if cfg.prio:
        a("s_setprio 2")

    def aread(idx):
        k, nt_ = divmod(idx, 9)
        j = k >> 1
        f = AF + 4 * (idx % NP)
        sl = j % 3
        reg = 4 + (nt_ & 1) + (2 if sl == 2 else 0)
        base = (WSL[sl] if sl < 2 else 0) + (k & 1) * 18432 + nt_ * 32
        return [f"ds_read_b64_tr_b16 {vr(f+2*rd,2)}, v{reg} offset:{base + rd*8*576}" for rd in range(2)]

    def bread(k):
        j = k >> 1
        return [f"ds_read_b128 {vr(BF+12*(k&1)+4*qq,4)}, v8 offset:{(j%4)*12288 + (k&1)*6144 + qq*1024}" for qq in range(3)]

    pend = []
    nexta = 0
    avail = 18
    b0 = bread(0)
    r0 = aread(0)
    for x in [r0[0], r0[1], b0[0], b0[1], b0[2]]:
        a(x)
    nexta = 1
    while nexta < NP - 1:
        for x in aread(nexta):
            a(x)
        nexta += 1
    for idx in range(144):
        k, nt_ = divmod(idx, 9)
        if idx % 18 == 15 and idx + 3 < 144:
            j1 = idx // 18 + 1
            assert not pend and nexta == avail
            if j1 == 1:
                a("s_waitcnt vmcnt(4)")
            if j1 == 2:
                a("s_waitcnt vmcnt(0)")
                flag_store(a, "s35", 2, cfg.omod)
                stamp(a, cfg, 6)
            a("s_waitcnt lgkmcnt(0)")
            a("s_barrier")
            if j1 == 2:
                stamp(a, cfg, 7)
            avail += 18
            ra = aread(nexta)
            nexta += 1
            pend += ra + bread(k + 1)
        if idx % 18 == 1:
            pend += bread(k + 1)
        while nexta < avail and nexta < idx + NP:
            pend += aread(nexta)
            nexta += 1
        f = AF + 4 * (idx % NP)
        for qq in range(3):
            n = 3 if len(pend) > 4 else (2 if len(pend) > 2 else 1)
            if qq == 2:
                n = len(pend) if idx % 18 == 14 else n
            d = ACC + (qq * 9 + nt_) * 4
            c = "0" if k == 0 else vr(d, 4)
            a(f"v_mfma_f32_16x16x32_bf16 {vr(d,4)}, {vr(f,4)}, {vr(BF+12*(k&1)+4*qq,4)}, {c}")
            for x in pend[:n]:
                a(x)
            pend = pend[n:]
    stamp(a, cfg, 8)
    a("s_lshl_b32 s25, s22, 2")
    a("s_add_u32 s25, s25, s21")
    a("s_lshl_b32 s26, s25, 3")
    a("s_add_u32 s26, s26, s20")
    a("s_lshl_b32 s26, s26, 2")
    a("s_add_u32 s26, s26, s24")
    a("s_mul_i32 s26, s26, 14336")
    a(f"s_add_u32 s26, s26, {WS_P}")
    a("v_lshlrev_b32 v1, 4, v0")
    tiles = []
    for qq in range(3):
        for p in range(4):
            tiles.append((qq * 9 + 2 * p, qq * 9 + 2 * p + 1))
    tiles.append((8, 17))
    tiles.append((26, None))
    for pi, (t0, t1) in enumerate(tiles):
        d = 4 + 4 * pi
        a(f"v_cvt_pk_bf16_f32 v{d}, v{ACC+4*t0}, v{ACC+4*t0+1}")
        a(f"v_cvt_pk_bf16_f32 v{d+1}, v{ACC+4*t0+2}, v{ACC+4*t0+3}")
        if t1 is not None:
            a(f"v_cvt_pk_bf16_f32 v{d+2}, v{ACC+4*t1}, v{ACC+4*t1+1}")
            a(f"v_cvt_pk_bf16_f32 v{d+3}, v{ACC+4*t1+2}, v{ACC+4*t1+3}")
        else:
            a(f"v_mov_b32 v{d+2}, 0")
            a(f"v_mov_b32 v{d+3}, 0")
        if pi % 4 == 0:
            a(f"s_add_u32 s28, s26, {pi*1024}")
        a(f"buffer_store_dwordx4 {vr(d,4)}, v1, {WS_}, s28 offen offset:{(pi%4)*1024}{cfg.pmod}")
    a("s_lshl_b32 s25, s25, 2")
    a("s_add_u32 s25, s25, s24")
    a("s_lshl_b32 s25, s25, 3")
    a("s_add_u32 s25, s25, s20")
    a("s_lshl_b32 s25, s25, 3")
    a(f"s_add_u32 s25, s25, {WS_PF}")
    a("s_waitcnt vmcnt(0)")
    flag_store(a, "s25", 60, cfg.pmod)
    a("s_barrier")
    stamp(a, cfg, 9)


def oproj_wload(a, cfg):
    a("s_mul_i32 s25, s24, 43")
    a("s_lshr_b32 s25, s25, 7")
    a("s_cmp_ge_u32 s24, 7")
    a("s_cselect_b32 s26, 1, 0")
    a("s_sub_u32 s25, s25, s26")
    a("s_mul_i32 s26, s25, 9216")
    a("s_sub_u32 s79, s79, s26")
    a(f"s_mul_i32 s25, s25, {16*1152}")
    for i in range(3):
        a(f"v_subrev_u32 v{WV+i}, s25, v{WV+i}")
    tr = Track()
    tr.issue(("W", 1), 3)
    tr.issue("st", 4)
    for j in range(0, 8):
        if j >= 1:
            a(f"s_waitcnt vmcnt({tr.count({('W', j)})})")
        a("s_barrier")
        jn = j + 2
        if jn < 8:
            sg, lit = wsoff(jn)
            for hf in range(2):
                for i in range(3):
                    dma(a, f"v{WV+i}", WO_, (sg, lit + hf * 32 * 1152), WSL[jn % 3] + hf * 18432 + i * 1024, base="s79")
            tr.issue(("W", jn), 6)
        if j == 1:
            a(f"s_waitcnt vmcnt({tr.count({'st'})})")
            flag_store(a, "s35", 4, cfg.omod)
            tr.issue("fl")
            stamp(a, cfg, 6)


def oproj_oload(a, cfg):
    a("s_sub_u32 s26, s24, 10")
    a("s_mul_i32 s27, s26, 6144")
    a("v_lshl_add_u32 v14, v0, 4, s27")
    a(f"s_add_u32 s27, s27, {OSL}")
    a("v_lshlrev_b32 v15, 3, v0")
    a("s_lshl_b32 s25, s22, 3")
    a("s_add_u32 s25, s25, s20")
    a("s_lshl_b32 s25, s25, 9")
    a(f"s_add_u32 s31, s25, {WS_F}")
    a("s_lshr_b32 s25, s21, 1")
    a("s_mul_i32 s25, s25, 6")
    a("s_lshl_b32 s25, 0x003f003f, s25")
    a("s_mov_b32 s74, s25")
    a("s_mov_b32 s75, s25")
    a("s_lshl_b32 s25, s21, 4")
    a("s_lshl_b64 s[72:73], 0xffff, s25")
    a("s_andn2_b64 s[74:75], s[74:75], s[72:73]")
    a("s_barrier")
    a("s_waitcnt vmcnt(4)")
    a("s_barrier")
    a("s_waitcnt vmcnt(0)")
    flag_store(a, "s35", 4, cfg.omod)
    stamp(a, cfg, 6)
    poll(a, "o", "v15", "s31", "s[74:75]", 8)
    stamp(a, cfg, 7)
    tr = Track()

    def odma(j):
        for i in range(6):
            dma(a, "v14", WS_, (f"s{76 + (j-2)//2}", (j & 1) * 12288 + i * 1024), (j % 4) * 12288 + i * 1024, cfg.ordm)
        tr.issue(j, 6)
    odma(2); odma(3); odma(4)
    for j in range(2, 8):
        a(f"s_waitcnt vmcnt({tr.count({j})})")
        a("s_barrier")
        if j + 3 < 8:
            odma(j + 3)


def reduce_(a, cfg):
    a("s_and_b32 s25, s20, 1")
    a("s_mul_i32 s25, s25, 7")
    a("s_add_u32 s25, s25, s24")
    a("s_sub_u32 s27, s25, 4")
    a("s_lshr_b32 s26, s20, 1")
    a("s_lshl_b32 s28, s22, 2")
    a("s_add_u32 s28, s28, s21")
    a("s_lshl_b32 s31, s28, 2")
    a("s_add_u32 s31, s31, s26")
    a("s_lshl_b32 s31, s31, 6")
    a(f"s_add_u32 s31, s31, {WS_PF}")
    a(f"s_mul_i32 s28, s28, {8*P_CU}")
    a("s_mul_i32 s29, s26, 14336")
    a("s_add_u32 s28, s28, s29")
    a("s_lshl_b32 s29, s27, 10")
    a("s_add_u32 s28, s28, s29")
    a(f"s_add_u32 s72, s28, {WS_P}")
    a("v_lshlrev_b32 v1, 4, v0")
    a("v_and_b32 v6, 7, v0")
    a("v_lshlrev_b32 v6, 3, v6")
    a("s_mul_i32 s25, s22, 221184")
    srd(a, 64, 14, 15, "s25", 221184)
    a("s_lshr_b32 s73, s27, 2")
    a("s_and_b32 s74, s27, 3")
    a("s_lshl_b32 s74, s74, 6")
    a("s_mov_b32 s75, 32")
    a("s_cmp_eq_u32 s27, 12")
    a("s_cselect_b32 s73, 0, s73")
    a("s_cselect_b32 s74, 256, s74")
    a(f"s_cselect_b32 s75, {16*1152}, s75")
    a("s_cmp_eq_u32 s27, 13")
    a("s_cselect_b32 s73, 2, s73")
    a("s_cselect_b32 s74, 256, s74")
    a("s_cselect_b32 s75, 0x1000000, s75")
    a("s_lshr_b32 s25, s21, 1")
    a("s_lshl_b32 s25, s25, 1")
    a("s_lshr_b32 s29, s26, 1")
    a("s_add_u32 s25, s25, s29")
    a("s_mul_i32 s25, s25, 3")
    a("s_add_u32 s25, s25, s73")
    a(f"s_mul_i32 s25, s25, {16*1152}")
    a("s_add_u32 s25, s25, s74")
    a("s_and_b32 s29, s21, 1")
    a("s_lshl_b32 s29, s29, 1")
    a("s_and_b32 s26, s26, 1")
    a("s_add_u32 s29, s29, s26")
    a("s_mul_i32 s29, s29, 288")
    a("s_add_u32 s25, s25, s29")
    a("v_and_b32 v2, 15, v0")
    a("v_mul_u32_u24 v2, 1152, v2")
    a("v_bfe_u32 v3, v0, 4, 1")
    a("v_mul_lo_u32 v3, v3, s75")
    a("v_lshrrev_b32 v4, 5, v0")
    a("v_lshl_add_u32 v2, v4, 4, v2")
    a("v_add3_u32 v2, v2, v3, s25")
    for i in range(8):
        a(f"v_mov_b32 v{8+i}, 0")
    a("s_mov_b64 s[74:75], -1")
    a("s_barrier")
    poll(a, "p", "v6", "s31", "s[74:75]", 4)
    stamp(a, cfg, 9)
    for g in range(8):
        a(f"s_add_u32 s28, s72, {g*P_CU}")
        a(f"buffer_load_dwordx4 {vr(16+4*g,4)}, v1, {WS_}, s28 offen{cfg.prd}")
    a("s_mov_b32 s32, 0x00003f80")
    a("s_mov_b32 s33, 0x3f800000")
    for g in range(8):
        for i in range(4):
            s = 16 + 4 * g + i
            a(f"v_dot2c_f32_bf16 v{8+2*i}, s32, v{s}")
            a(f"v_dot2c_f32_bf16 v{9+2*i}, s33, v{s}")
    for i in range(4):
        a(f"v_cvt_pk_bf16_f32 v{48+i}, v{8+2*i}, v{9+2*i}")
    a("v_permlane16_swap_b32 v48, v50")
    a("v_permlane16_swap_b32 v49, v51")
    a(f"buffer_store_dwordx4 v[48:51], v2, {OUT_}, 0 offen")


def kernel(a, cfg, name):
    a.raw(f".globl {name}")
    a.raw(".p2align 8")
    a.raw(f".type {name},@function")
    a.raw(f"{name}:")
    a.reset_state()
    a("s_load_dwordx16 s[4:19], s[0:1], 0")
    a("s_memrealtime s[36:37]")
    a("s_cmp_ge_u32 s2, 256")
    a("s_cbranch_scc1 L_end")
    if cfg.mapping == 0:
        a("s_and_b32 s21, s2, 3")
        a("s_bfe_u32 s20, s2, 0x30003")
        a("s_and_b32 s22, s2, 4")
        a("s_lshr_b32 s25, s2, 6")
        a("s_add_u32 s22, s22, s25")
    elif cfg.mapping == 2:
        a("s_bfe_u32 s21, s2, 0x20003")
        a("s_and_b32 s20, s2, 3")
        a("s_lshl_b32 s20, s20, 1")
        a("s_bfe_u32 s25, s2, 0x10005")
        a("s_add_u32 s20, s20, s25")
        a("s_and_b32 s22, s2, 4")
        a("s_lshr_b32 s25, s2, 6")
        a("s_add_u32 s22, s22, s25")
    else:
        a("s_and_b32 s22, s2, 7")
        a("s_bfe_u32 s21, s2, 0x20003")
        a("s_lshr_b32 s20, s2, 5")
    a("s_lshl_b32 s23, s20, 2")
    a("s_add_u32 s23, s23, s21")
    a("v_lshrrev_b32 v1, 6, v0")
    a("v_and_b32 v0, 63, v0")
    a("v_readfirstlane_b32 s24, v1")
    a("s_mov_b32 s3, 0")
    if cfg.stamps:
        for i in range(82, 102):
            a(f"s_mov_b32 s{i}, 0")
    a("s_waitcnt lgkmcnt(0)")
    if cfg.stamps:
        a("s_mov_b64 s[80:81], s[36:37]")
    a.label("L_start")
    a("s_cmp_lt_u32 s24, 4")
    a("s_cbranch_scc1 L_qc")
    a("s_sub_u32 s26, s24, 4")
    a("s_lshl_b32 s27, s26, 10")
    swz4_voff(a, "v13", 8192, "s26", 4 * 8192)
    a("s_lshl_b32 s31, s23, 8")
    srd(a, 44, 10, 11, "s31", 576 * 8192 - 31 * 256)
    if cfg.rot:
        a("s_and_b32 s25, s22, 3")
        a("s_lshl_b32 s25, s25, 1")
        if cfg.mapping == 2:
            a("s_bfe_u32 s31, s2, 0x30003")
            a("s_add_u32 s25, s25, s31")
        else:
            a("s_add_u32 s25, s25, s20")
        a("s_cmp_ge_u32 s25, 9")
        a("s_cselect_b32 s31, 9, 0")
        a("s_sub_u32 s25, s25, s31")
        a("s_lshl_b32 s34, s25, 7")
        a("s_lshl_b32 s35, s25, 19")
    else:
        a("s_mov_b32 s34, 0")
        a("s_mov_b32 s35, 0")
    tr = Track()
    cnt = {"x": 0, "w": 0, "k": 0, "xs": False, "ks": False}

    def qop(c, bar):
        if c == "x":
            if not cnt["xs"]:
                swz8_voff(a, "v12", 1152, "s26", 8 * 1152)
                a("s_mul_i32 s25, s22, 221184")
                srd(a, 40, 4, 5, "s25", 221184)
                cnt["xs"] = True
            ks, i = divmod(cnt["x"], 3)
            assert ks < 9 and bar >= ks - 2, (c, ks, bar)
            dma(a, "v12", X_, ("s34", i * 64 * 1152), QSL[ks % 3] + 16384 + i * 8192)
            tr.issue(("Q", ks))
            cnt["x"] += 1
            if i == 2:
                a("s_add_u32 s34, s34, 128")
                a("s_cmp_eq_u32 s34, 1152")
                a("s_cselect_b32 s34, 0, s34")
        elif c == "w":
            ks, i = divmod(cnt["w"], 2)
            assert ks < 9 and bar >= ks - 2, (c, ks, bar)
            dma(a, "v13", WQ_, ("s35", i * 32 * 8192), QSL[ks % 3] + i * 8192)
            tr.issue(("Q", ks))
            cnt["w"] += 1
            if i == 1:
                a(f"s_add_u32 s35, s35, {64*8192}")
                a(f"s_cmp_eq_u32 s35, {576*8192}")
                a("s_cselect_b32 s35, 0, s35")
        else:
            op = KVOPS[cnt["k"]]
            assert op[1] == 0 or (bar >= 6 + op[1] and not (op[0] == "V" and op[1] >= 3) and op[1] <= 3), (op, bar)
            kvop(a, cfg, tr, op)
            cnt["k"] += 1
    for c in cfg.q_sched[0]:
        qop(c, -1)
    swz8_voff(a, "v14", 256, "s26", 2048)
    swz4_voff(a, "v15", 256, "s26", 1024)
    common_setup(a, cfg)
    for i in range(10):
        if i < 9:
            assert cnt["x"] >= 3 * (i + 1) and cnt["w"] >= 2 * (i + 1)
            a(f"s_waitcnt vmcnt({tr.count({('Q', i)})})")
        a("s_barrier")
        for c in cfg.q_sched[i + 1]:
            qop(c, i)
        if i == 0:
            late_setup(a, cfg)
    assert cnt["k"] >= 4
    a(f"s_waitcnt vmcnt({tr.count({('K',0),('V',0)})})")
    a("s_barrier")
    stamp(a, cfg, 3)
    a("s_cmp_lg_u32 s3, 0")
    a("s_cbranch_scc1 L_slow_l")
    trs = Track(); trs.q = list(tr.q)
    nop = cnt["k"]
    attention(a, cfg, True, tr, False, nop)
    a("s_branch L_fin")
    a.label("L_qc")
    ACC, FR = 64, 16
    a("s_lshl_b32 s25, s22, 5")
    srd(a, 68, 16, 17, "s25", 32)
    a("s_or_b32 s36, s36, 1")
    a("v_mov_b32 v166, s36")
    a("v_mov_b32 v167, s37")
    a("s_or_b32 s25, s23, s24")
    a("s_or_b32 s25, s25, s3")
    a("s_cmp_eq_u32 s25, 0")
    a("s_cbranch_scc0 L_nolead")
    a("s_mov_b64 exec, 1")
    a(f"buffer_store_dwordx2 v[166:167], off, {DBG_}, 0 sc0 sc1")
    a("s_mov_b64 exec, -1")
    a.label("L_nolead")
    a("s_and_b32 s29, s24, 1")
    a("s_lshr_b32 s30, s24, 1")
    a("s_mul_i32 s25, s30, 12288")
    a(f"s_add_u32 s25, s25, {QSL[0] + 16384}")
    b128_addr(a, 56, "s25")
    a("v_bfe_u32 v1, v0, 2, 2")
    a("v_lshrrev_b32 v2, 5, v0")
    a("v_lshl_add_u32 v2, v2, 3, v1")
    a("v_lshlrev_b32 v2, 8, v2")
    a("s_lshl_b32 s25, s29, 1")
    a("v_xor_b32 v1, s25, v1")
    a("v_lshl_add_u32 v2, v1, 6, v2")
    a("v_bfe_u32 v1, v0, 4, 1")
    a("v_lshl_add_u32 v2, v1, 5, v2")
    a("v_and_b32 v1, 1, v0")
    a("v_lshl_add_u32 v2, v1, 4, v2")
    a("v_bfe_u32 v1, v0, 1, 1")
    a("v_lshl_add_u32 v60, v1, 3, v2")
    a(f"v_add_u32 v60, {QSL[0]}, v60")
    a("v_xor_b32 v61, 64, v60")
    for i in range(4):
        a(f"v_add_u32 v{12+i}, {QSL[1]-QSL[0]}, v{56+i}")
    for i in range(2):
        a(f"v_add_u32 v{62+i}, {QSL[1]-QSL[0]}, v{60+i}")
    a("s_lshl_b32 s26, s29, 12")
    a("v_lshl_add_u32 v1, v0, 4, s26")
    a("s_cmp_eq_u32 s30, 0")
    for qq in range(3):
        a(f"s_cselect_b32 s25, {11+qq}, {[4,18,19][qq]}")
        a(f"v_lshl_add_u32 v{163+qq}, s25, 13, v1")
    common_setup(a, cfg)
    late_setup(a, cfg)

    def frag_reads(g):
        ks, sub, st = g >> 2, g & 3, g & 1
        sl = ks % 3
        f = FR + 20 * st
        xb, wb = (12, 62) if sl == 1 else (56, 60)
        so = QSL[sl] - QSL[0] if sl != 1 else 0
        L = []
        for tt in range(2):
            for rd in range(2):
                L.append(f"ds_read_b64_tr_b16 {vr(f+4*tt+2*rd,2)}, v{wb+tt} offset:{so + sub*4096 + rd*1024}")
        for qq in range(3):
            L.append(f"ds_read_b128 {vr(f+8+4*qq,4)}, v{xb+sub} offset:{so + qq*4096}")
        return [L[0], L[1], L[4], L[5], L[6], L[2], L[3]]

    a("s_barrier")
    stamp(a, cfg, 1)
    for r in frag_reads(0):
        a(r)
    for g in range(36):
        st = g & 1
        f = FR + 20 * st
        nxt = frag_reads(g + 1) if g < 35 else []
        newstage = (g & 3) == 3
        if newstage:
            a("s_waitcnt lgkmcnt(0)")
        mf = []
        for tt in range(2):
            for qq in range(3):
                d = ACC + (tt * 3 + qq) * 16
                c = "0" if g == 0 else vr(d, 16)
                mf.append(f"v_mfma_f32_32x32x16_bf16 {vr(d,16)}, {vr(f+4*tt,4)}, {vr(f+8+4*qq,4)}, {c}")
        a(mf[0])
        if newstage:
            a("s_barrier")
        ri = 0
        for i in range(6):
            if i > 0:
                a(mf[i])
            k = 3 if i == 0 else 2
            for r in nxt[ri:ri + k]:
                a(r)
            ri += k
        if g == 13:
            a("s_cmp_eq_u32 s24, 0")
            a("s_cselect_b64 exec, 1, 0")
            a(f"buffer_load_dwordx2 v[166:167], off, {DBG_}, 0 sc0 sc1")
            a("s_mov_b64 exec, -1")
    stamp(a, cfg, 2)
    a(f"s_mov_b32 s32, {f32bits(math.log2(math.e)/math.sqrt(128.0)):#x}")
    a("s_mov_b32 s33, s32")
    n = 0
    for tt in range(2):
        for qq in range(3):
            d = ACC + (tt * 3 + qq) * 16
            for u in range(2):
                t0 = FR + 4 * (n % 8)
                n += 1
                for i in range(4):
                    a(f"v_pk_mul_f32 {vr(d+8*u+2*i,2)}, {vr(d+8*u+2*i,2)}, s[32:33]")
                for i in range(4):
                    a(f"v_cvt_pk_bf16_f32 v{t0+i}, v{d+8*u+2*i}, v{d+8*u+2*i+1}")
                a(f"ds_write_b128 v{163+qq}, {vr(t0,4)} offset:{(2*tt + u)*1024}")
    a("v_readfirstlane_b32 s36, v166")
    a("v_readfirstlane_b32 s37, v167")
    a(f"s_mov_b32 s38, {SPIN}")
    a("s_waitcnt lgkmcnt(0)")
    a.label("L_nonce")
    a("s_cmp_lg_u32 s36, 0")
    a("s_cbranch_scc1 L_nonced")
    a(f"buffer_load_dwordx2 v[166:167], off, {DBG_}, 0 sc0 sc1")
    a("v_readfirstlane_b32 s36, v166")
    a("v_readfirstlane_b32 s37, v167")
    a("s_sub_u32 s38, s38, 1")
    a("s_cbranch_scc0 L_nonce")
    a.label("L_nonced")
    a("s_barrier")
    stamp(a, cfg, 3)
    a("s_cmp_lg_u32 s3, 0")
    a("s_cbranch_scc1 L_slow_n")
    attention(a, cfg, False, Track(), False, nop)
    a.label("L_fin")
    finish(a, cfg)
    a("s_cmp_lt_u32 s24, 4")
    a("s_cbranch_scc1 L_oc")
    a("s_cmp_lt_u32 s24, 10")
    a("s_cbranch_scc1 L_ow")
    oproj_oload(a, cfg)
    a("s_cmp_eq_u32 s24, 10")
    a("s_cbranch_scc1 L_red")
    a("s_barrier")
    a("s_branch L_out")
    a.label("L_ow")
    oproj_wload(a, cfg)
    a.label("L_red")
    reduce_(a, cfg)
    a("s_branch L_out")
    a.label("L_oc")
    oproj_compute(a, cfg)
    a.label("L_out")
    if cfg.stamps:
        a("s_waitcnt vmcnt(0)")
        stamp(a, cfg, 10)
        a("s_mul_i32 s25, s2, 12")
        a("s_add_u32 s25, s25, s24")
        a("s_lshl_b32 s25, s25, 7")
        a(f"s_add_u32 s25, s25, {STAMP_OFF}")
        a("v_mov_b32 v2, 0")
        a("s_mov_b64 exec, 1")
        for i in range(11):
            a(f"v_mov_b32 v4, s{80+2*i}")
            a(f"v_mov_b32 v5, s{81+2*i}")
            a(f"buffer_store_dwordx2 v[4:5], v2, {WS_}, s25 offen offset:{8*i}")
    a.label("L_end")
    a("s_endpgm")
    a.label("L_restart")
    a("s_waitcnt vmcnt(0) lgkmcnt(0)")
    a("s_barrier")
    a("s_mov_b32 s3, 1")
    a("s_branch L_start")
    a.label("L_slow_l")
    max_pass(a, "l")
    attention(a, cfg, True, trs, True, nop)
    a("s_branch L_fin")
    a.label("L_slow_n")
    max_pass(a, "n")
    attention(a, cfg, False, Track(), True, nop)
    a("s_branch L_fin")


def descriptor(name, vg):
    return f""".amdhsa_kernel {name}
  .amdhsa_next_free_vgpr {vg}
  .amdhsa_next_free_sgpr 102
  .amdhsa_accum_offset {(vg+3)//4*4}
  .amdhsa_group_segment_fixed_size 0
  .amdhsa_kernarg_size 64
  .amdhsa_user_sgpr_count 2
  .amdhsa_user_sgpr_kernarg_segment_ptr 1
  .amdhsa_system_sgpr_workgroup_id_x 1
.end_amdhsa_kernel
"""


def build(cfg):
    a = Asm()
    a.raw(HEADER.rstrip("\n"))
    a.raw("; @launch grid=(256,1,1) block=(768,1,1) lds=163840")
    a.raw('.amdgcn_target "amdgcn-amd-amdhsa--gfx950"')
    a.raw(".text")
    kernel(a, cfg, KNAME)
    print("maxv", a.maxv, "instrs", a.ninstr, "nops", a.nops_inserted, file=sys.stderr)
    a.raw('.section .rodata,"a"')
    a.raw(".p2align 6")
    a.raw(descriptor(KNAME, 168))
    return a.text()


if __name__ == "__main__":
    cfg = Cfg()
    out = sys.argv[1]
    for kv in sys.argv[2:]:
        k, v = kv.split("=")
        setattr(cfg, k, eval(v))
    if cfg.att_sched is None:
        d = {}
        pos = {0: [1, 6, 14], 1: [1, 5, 10, 14], 2: [1, 6, 14], 3: [1, 5, 10, 14], 4: [1, 6, 14], 5: [1, 5, 10, 14]}
        for st_, pl in pos.items():
            for p_ in pl:
                d[(st_, p_)] = "k"
        for p_ in (1, 6, 14):
            d[(6, p_)] = "w"
        for p_ in (1, 4, 7):
            d[(7, p_)] = "w"
        cfg.att_sched = d
    open(out, "w").write(build(cfg))
```

```python
import sys
sys.path.insert(0, "gen")
from asmdsl import Asm
from gen2 import *

def build(n=14, nw=4, mods=" sc1", pre=None, peer=1, rmods=" sc1", base=16<<20, twice=False):
    cfg = Cfg(); cfg.stamps = True
    a = Asm()
    a.raw(f"; @launch grid=(256,1,1) block=({64*nw},1,1) lds=163840")
    a.raw('.amdgcn_target "amdgcn-amd-amdhsa--gfx950"')
    a.raw(".text")
    name = KNAME
    a.raw(f".globl {name}")
    a.raw(".p2align 8")
    a.raw(f".type {name},@function")
    a.raw(f"{name}:")
    a("s_load_dwordx16 s[4:19], s[0:1], 0")
    a("s_memrealtime s[80:81]")
    a("s_cmp_ge_u32 s2, 256")
    a("s_cbranch_scc1 L_end")
    a("v_lshrrev_b32 v1, 6, v0")
    a("v_and_b32 v0, 63, v0")
    a("v_readfirstlane_b32 s24, v1")
    a("s_waitcnt lgkmcnt(0)")
    srd(a, 60, 18, 19, None, WS_BYTES)
    a("s_lshl_b32 s26, s2, 17")
    srd(a, 48, 6, 7, "s26", 131072)
    a("v_lshlrev_b32 v1, 4, v0")
    a(f"s_mul_i32 s25, s2, {nw}")
    a("s_add_u32 s25, s25, s24")
    a(f"s_mul_i32 s30, s25, {n*1024}")
    a(f"s_add_u32 s30, s30, {base}")
    a(f"s_xor_b32 s25, s2, {peer}")
    a(f"s_mul_i32 s25, s25, {nw}")
    a("s_add_u32 s25, s25, s24")
    a(f"s_mul_i32 s31, s25, {n*1024}")
    a(f"s_add_u32 s31, s31, {base}")
    if pre == "tlb":
        a(f"buffer_load_dword v4, off, {WS_}, s30")
        a(f"buffer_load_dword v5, off, {WS_}, s31")
        a("s_waitcnt vmcnt(0)")
    elif pre == "full":
        for i in range(n):
            a(f"s_add_u32 s28, s30, {i*1024}")
            a(f"buffer_load_dwordx4 {vr(8+4*i,4)}, v1, {WS_}, s28 offen")
        a("s_waitcnt vmcnt(0)")
    elif pre == "wr":
        for i in range(n):
            a(f"s_add_u32 s28, s30, {i*1024}")
            a(f"buffer_store_dwordx4 {vr(8,4)}, v1, {WS_}, s28 offen{mods}")
        a("s_waitcnt vmcnt(0)")
    a("s_lshl_b32 s27, s24, 10")
    a("v_lshl_add_u32 v2, v0, 4, s27")
    for i in range(65536 // (nw * 1024)):
        off = i * nw * 1024
        a(f"s_mov_b32 s28, {off}")
        a(f"s_add_u32 m0, s27, {off}")
        a(f"buffer_load_dwordx4 v2, s[48:51], s28 offen nt lds")
    a("s_waitcnt vmcnt(0)")
    a("s_add_u32 s40, s80, 900")
    a("s_lshr_b32 s40, s40, 8")
    a.label("L_w1")
    a("s_memrealtime s[42:43]")
    a("s_waitcnt lgkmcnt(0)")
    a("s_sub_u32 s44, s42, s80")
    a("s_cmp_lt_u32 s44, 900")
    a("s_cbranch_scc1 L_w1")
    a("s_barrier")
    stamp(a, cfg, 1)
    for i in range(n):
        a(f"s_add_u32 s28, s30, {i*1024}")
        a(f"buffer_store_dwordx4 {vr(8,4)}, v1, {WS_}, s28 offen{mods}")
    a("s_waitcnt vmcnt(0)")
    stamp(a, cfg, 2)
    a.label("L_w2")
    a("s_memrealtime s[42:43]")
    a("s_waitcnt lgkmcnt(0)")
    a("s_sub_u32 s44, s42, s80")
    a("s_cmp_lt_u32 s44, 1900")
    a("s_cbranch_scc1 L_w2")
    a("s_barrier")
    stamp(a, cfg, 3)
    for i in range(n):
        a(f"s_add_u32 s28, s31, {i*1024}")
        a(f"buffer_load_dwordx4 {vr(8+4*i,4)}, v1, {WS_}, s28 offen{rmods}")
    a("s_waitcnt vmcnt(0)")
    stamp(a, cfg, 4)
    for i in range(n):
        a(f"s_add_u32 s28, s31, {i*1024}")
        a(f"buffer_load_dwordx4 {vr(8+4*i,4)}, v1, {WS_}, s28 offen{rmods}")
    a("s_waitcnt vmcnt(0)")
    stamp(a, cfg, 5)
    a(f"s_mul_i32 s25, s2, {nw}")
    a("s_add_u32 s25, s25, s24")
    a("s_lshl_b32 s25, s25, 7")
    a(f"s_add_u32 s25, s25, {STAMP_OFF}")
    a("v_mov_b32 v2, 0")
    a("s_mov_b64 exec, 1")
    for i in range(6):
        a(f"v_mov_b32 v4, s{80+2*i}")
        a(f"v_mov_b32 v5, s{81+2*i}")
        a(f"buffer_store_dwordx2 v[4:5], v2, {WS_}, s25 offen offset:{8*i}")
    a.label("L_end")
    a("s_endpgm")
    a.raw('.section .rodata,"a"')
    a.raw(".p2align 6")
    a.raw(descriptor(KNAME, 128))
    return a.text()

V = {
 "w14": dict(),
 "w14tlb": dict(pre="tlb"),
 "w14full": dict(pre="full"),
 "w14wr": dict(pre="wr"),
 "w5": dict(n=5),
 "w5tlb": dict(n=5, pre="tlb"),
 "w14pl": dict(mods="", peer=8),
 "w14same": dict(peer=8),
 "w1": dict(n=1),
 "w1tlb": dict(n=1, pre="tlb"),
}
for k, kw in V.items():
    open(f"mb_{k}.s", "w").write(build(**kw))
print(" ".join(f"out/mb_{k}.s" for k in V))
print(", ".join(f'"out/mb_{k}.s"' for k in V))
```

```python
import sys, struct, math
sys.path.insert(0, "gen")
from asmdsl import Asm

KNAME = "standalone__mha_block_cached__near_ridge_kernel"
STAMP_OFF = 192 << 20
HEADER = open("standalone__mha_block_cached__near_ridge.s.ref").read().split("; Override")[0]

WS_O = 0
WS_P = 16 << 20
P_CU = 4 * 14 * 1024
WS_F = 32 << 20
WS_PF = WS_F + 65536
WS_CK = 40 << 20
RED = 73728
WS_BYTES = 256 << 20

U = 8192
KVB = [0, 40960, 114688, 73728]
QSL = [32768, 114688, 73728]
WSL = [0, 36864, 73728]
OSL = 110592
MISC = 159744
M_ST = MISC + 3072
M_NONCE = MISC + 3200

X_, WQ_, K_, V_, WO_, WS_, OUT_, DBG_ = "s[40:43]", "s[44:47]", "s[48:51]", "s[52:55]", "s[56:59]", "s[60:63]", "s[64:67]", "s[68:71]"
SPIN = 1 << 16


def f32bits(x):
    return struct.unpack("<I", struct.pack("<f", x))[0]


class Cfg:
    nt_kv = True
    stamps = False
    prio = True
    nb = 6
    mapping = 2
    rot = True
    force_fb = False
    pmod = " sc1"
    omod = " sc1"
    prd = " sc1"
    ordm = " sc1"
    q_sched = ['wxxxwxxxw', 'wxxxw', 'wxxxw', 'wxxxw', 'wxxxw', 'wxxxw', 'wxxxw', 'wxxxww', 'kkkk', 'kk', 'kkk']
    att_sched = None
    wbl2 = None
    wtouch = True
    tpos = (5, 14)
    psleep = 0
    e0 = True
    hint = 146
    nfast = 8
    odelay = 0
    cpf = True
    utouch = None
    upos = (5, 15)
    hsleep = 1
    osleep = 0


def vr(a, n):
    return f"v[{a}:{a+n-1}]"


def stamp(a, cfg, slot):
    if cfg.stamps:
        a(f"s_memrealtime s[{80+2*slot}:{81+2*slot}]")
        a("s_waitcnt lgkmcnt(0)")


def srd(a, d, lo, hi, off_sgpr, nrec):
    if off_sgpr is None:
        a(f"s_mov_b32 s{d}, s{lo}")
        a(f"s_mov_b32 s{d+1}, s{hi}")
    else:
        a(f"s_add_u32 s{d}, s{lo}, {off_sgpr}")
        a(f"s_addc_u32 s{d+1}, s{hi}, 0")
    a(f"s_mov_b32 s{d+2}, {nrec}")
    a(f"s_mov_b32 s{d+3}, 0x20000")


class Track:
    def __init__(self):
        self.q = []

    def issue(self, tag, n=1):
        self.q += [tag] * n

    def count(self, tags):
        last = -1
        for i, t in enumerate(self.q):
            if t in tags:
                last = i
        return min(63, len(self.q) - 1 - last)


def dma(a, vo, srd_, soff, ldsoff, mods="", base="s27"):
    a(f"s_add_u32 m0, {base}, {ldsoff}")
    if isinstance(soff, tuple):
        a(f"s_add_u32 s28, {soff[0]}, {soff[1]}")
    else:
        a(f"s_mov_b32 s28, {soff}")
    a(f"buffer_load_dwordx4 {vo}, {srd_}, s28 offen{mods} lds")


def swz8_voff(a, dst, pitch, jreg, jmul):
    a("v_lshrrev_b32 v1, 4, v0")
    a(f"s_and_b32 s25, {jreg}, 1")
    a("s_lshl_b32 s25, s25, 2")
    a("v_add_u32 v1, s25, v1")
    a("v_and_b32 v2, 7, v0")
    a("v_xor_b32 v1, v1, v2")
    a("v_lshlrev_b32 v1, 4, v1")
    a("v_lshrrev_b32 v2, 3, v0")
    a(f"v_mul_u32_u24 v2, {pitch}, v2")
    a(f"s_mul_i32 s25, {jreg}, {jmul}")
    a(f"v_add3_u32 {dst}, v1, v2, s25")


def swz4_voff(a, dst, pitch, jreg, jmul):
    a("v_lshrrev_b32 v1, 4, v0")
    a("v_lshlrev_b32 v2, 2, v1")
    a("v_and_b32 v3, 15, v0")
    a("v_xor_b32 v2, v2, v3")
    a("v_lshlrev_b32 v2, 4, v2")
    a(f"v_mul_u32_u24 v1, {pitch}, v1")
    a(f"s_mul_i32 s25, {jreg}, {jmul}")
    a(f"v_add3_u32 {dst}, v1, v2, s25")


def b128_addr(a, dst0, base_sgpr):
    a("v_and_b32 v1, 31, v0")
    a("v_lshrrev_b32 v2, 1, v1")
    a("v_and_b32 v2, 7, v2")
    a("v_lshrrev_b32 v3, 5, v0")
    a("v_xor_b32 v2, v2, v3")
    a("v_lshlrev_b32 v2, 4, v2")
    a("v_lshlrev_b32 v1, 7, v1")
    a(f"v_add3_u32 v{dst0}, v1, v2, {base_sgpr}")
    for i in range(1, 4):
        a(f"v_xor_b32 v{dst0+i}, {i*32}, v{dst0}")


KA, VA, Q, POOL, S, O = 4, 8, 16, 48, 80, 96
WV = 160
NEGM = 163


def kvop(a, cfg, tr, op):
    kind, s, i = op
    nt = " nt" if cfg.nt_kv else ""
    if kind == "K":
        dma(a, "v14", K_, s * 16384 + i * 128, KVB[s % 4] + i * 8192, nt)
    else:
        dma(a, "v15", V_, s * 16384 + i * 8192, KVB[s % 4] + 16384 + i * 8192, nt)
    tr.issue((kind, s))


KVOPS = [(k, s, i) for s in range(8) for k in "KV" for i in range(2)]


def wsoff(j):
    return (f"s{72 + j // 2}", (j & 1) * 64 * 1152)


def wdma12(a, tr, j):
    for i in range(3):
        dma(a, f"v{WV+i}", WO_, wsoff(j), WSL[j % 3] + i * 1024, base="s79")
    tr.issue(("W", j), 3)


def attention(a, cfg, loader, tr, biased, nxt_op):
    def off(s):
        return KVB[s % 4] - (73728 if s % 4 >= 2 else 0)

    def kread(s, uu):
        a(f"ds_read_b128 {vr(POOL+4*uu,4)}, v{KA+(uu&3)} offset:{off(s) + (uu>>2)*8192}")

    def vread(s, j):
        u, t = j >> 2, j & 3
        for rd in range(2):
            a(f"ds_read_b64_tr_b16 {vr(POOL+4*j+2*rd,2)}, v{VA+t} offset:{off(s) + u*4096 + rd*2048}")

    def rebase(base, s):
        if s % 2 == 0 and s > 0:
            op = "v_add_u32" if s % 4 == 2 else "v_subrev_u32"
            for i in range(4):
                a(f"{op} v{base+i}, 73728, v{base+i}")

    st = {"op": nxt_op, "w": 0, "bar": 0}

    def free(op):
        k, s, i = op
        if s < 3 or (k == "K" and s == 3):
            return True
        if s == 3:
            return st["bar"] >= 1
        return st["bar"] >= s - 3

    def slot(s, pos):
        for what in cfg.att_sched.get((s, pos), ""):
            if what == "k":
                if st["op"] < len(KVOPS):
                    assert free(KVOPS[st["op"]]), (s, pos, KVOPS[st["op"]])
                    if loader:
                        kvop(a, cfg, tr, KVOPS[st["op"]])
                    st["op"] += 1
            elif what == "u":
                if loader and cfg.utouch:
                    a(f"s_mov_b64 exec, {cfg.utouch}")
                    a(f"buffer_load_dword v165, v166, {OUT_}, 0 offen sc1")
                    a.forget_vm()
                    a("s_mov_b64 exec, -1")
                    tr.issue("T")
            elif what == "t":
                if loader and cfg.wtouch:
                    a("s_mov_b64 exec, 0xffff")
                    a(f"buffer_load_dword v165, v164, {WO_}, s39 offen")
                    a.forget_vm()
                    a("s_mov_b64 exec, -1")
                    tr.issue("T")
            else:
                j, i = divmod(st["w"], 3)
                assert j < 2 and st["bar"] >= 5 + j, (s, pos, j)
                dma(a, f"v{WV+i}", WO_, wsoff(j), WSL[j % 3] + i * 1024, base="s79")
                tr.issue(("W", j))
                st["w"] += 1

    for uu in range(8):
        if not biased:
            a(f"ds_read_b128 {vr(Q+4*uu,4)}, v3 offset:{uu*1024}")
        kread(0, uu)
    a("v_mov_b32 v12, 0")
    a("v_mov_b32 v13, 0")
    for s in range(8):
        a.comment(f"---- attention stage {s}")
        if biased:
            for r in range(16):
                a(f"v_mov_b32 v{S+r}, v{NEGM}")
        if cfg.prio:
            a("s_setprio 1")
        for uu in range(8):
            c = "0" if (uu == 0 and not biased) else vr(S, 16)
            a(f"v_mfma_f32_32x32x16_bf16 {vr(S,16)}, {vr(POOL+4*uu,4)}, {vr(Q+4*uu,4)}, {c}")
            vread(s, uu)
            slot(s, uu)
        if cfg.prio:
            a("s_setprio 0")
        if s < 7:
            rebase(KA, s + 1)
            rebase(VA, s + 1)
        for r in range(8):
            a(f"v_exp_f32 v{S+r}, v{S+r}")
        for r in range(8):
            a(f"v_add_f32 v{12+(r&1)}, v{12+(r&1)}, v{S+r}")
        for i in range(4):
            a(f"v_cvt_pk_bf16_f32 v{S+i}, v{S+2*i}, v{S+2*i+1}")

        def pv(j):
            u, t = j >> 2, j & 3
            c = "0" if (s == 0 and u == 0) else vr(O + 16 * t, 16)
            a(f"v_mfma_f32_32x32x16_bf16 {vr(O+16*t,16)}, {vr(POOL+4*j,4)}, {vr(S+8*u,4)}, {c}")
        for j in range(4):
            a(f"v_exp_f32 v{S+8+2*j}, v{S+8+2*j}")
            a(f"v_exp_f32 v{S+9+2*j}, v{S+9+2*j}")
            pv(j)
            a(f"v_add_f32 v12, v12, v{S+8+2*j}")
            a(f"v_add_f32 v13, v13, v{S+9+2*j}")
            a(f"v_cvt_pk_bf16_f32 v{S+8+j}, v{S+8+2*j}, v{S+9+2*j}")
            slot(s, 8 + j)
        for j in range(4, 8):
            pv(j)
            if s < 7:
                if j + 1 == cfg.nb:
                    need = 4 * (s + 2)
                    assert st["op"] >= need, (s, st["op"])
                    if loader:
                        n = tr.count({("K", s + 1), ("V", s + 1)})
                        a(f"s_waitcnt vmcnt({n}) lgkmcnt(0)")
                    else:
                        a("s_waitcnt lgkmcnt(0)")
                    a("s_barrier")
                    st["bar"] += 1
                    for uu in range(j + 1):
                        kread(s + 1, uu)
                elif j + 1 > cfg.nb:
                    kread(s + 1, j)
            slot(s, 8 + j)
    assert st["op"] == len(KVOPS) and st["w"] == 6, st


def max_pass(a, tag):
    for uu in range(8):
        a(f"ds_read_b128 {vr(Q+4*uu,4)}, v3 offset:{uu*1024}")
    a("v_and_b32 v1, 31, v0")
    a("v_lshlrev_b32 v1, 8, v1")
    a("v_lshrrev_b32 v2, 5, v0")
    a("v_lshl_add_u32 v1, v2, 4, v1")
    a(f"v_mov_b32 v{NEGM}, 0xff800000")
    a("s_mov_b32 s28, 0")
    a("s_waitcnt lgkmcnt(0)")
    a.label(f"L_max_{tag}")
    for uu in range(8):
        a(f"buffer_load_dwordx4 {vr(POOL+4*uu,4)}, v1, {K_}, s28 offen offset:{uu*32}")
    for uu in range(8):
        c = "0" if uu == 0 else vr(S, 16)
        a(f"v_mfma_f32_32x32x16_bf16 {vr(S,16)}, {vr(POOL+4*uu,4)}, {vr(Q+4*uu,4)}, {c}")
    for r in range(16):
        a(f"v_max_f32 v{NEGM}, v{NEGM}, v{S+r}")
    a("s_add_u32 s28, s28, 8192")
    a("s_cmp_lt_u32 s28, 131072")
    a(f"s_cbranch_scc1 L_max_{tag}")
    a(f"v_mov_b32 v1, v{NEGM}")
    a(f"v_permlane32_swap_b32 v1, v{NEGM}")
    a(f"v_max_f32 v{NEGM}, v{NEGM}, v1")
    a(f"v_sub_f32 v{NEGM}, 0, v{NEGM}")


def common_setup(a, cfg):
    a("s_lshl_b32 s25, s22, 5")
    a("s_add_u32 s25, s25, s23")
    a("s_lshl_b32 s26, s25, 17")
    srd(a, 48, 6, 7, "s26", 131072)
    srd(a, 52, 8, 9, "s26", 131072)


def late_setup(a, cfg, loader):
    a("s_and_b32 s25, s21, 1")
    a("s_mul_i32 s25, s25, 576")
    srd(a, 56, 12, 13, "s25", 4096 * 1152 - 576)
    srd(a, 60, 18, 19, None, WS_BYTES)
    a(f"s_mul_i32 s72, s23, {128*1152}")
    a("s_and_b32 s25, s22, 3")
    a("s_cmp_eq_u32 s25, 3")
    a("s_cselect_b32 s25, 0, s25")
    a("s_lshr_b32 s31, s21, 1")
    a("s_mul_i32 s31, s31, 24576")
    for i in range(3):
        a(f"s_add_u32 s26, s25, {i}")
        a("s_cmp_ge_u32 s26, 3")
        a("s_cselect_b32 s39, 3, 0")
        a("s_sub_u32 s26, s26, s39")
        a("s_add_u32 s26, s26, s21")
        a("s_add_u32 s26, s26, 1")
        a("s_and_b32 s26, s26, 3")
        a("s_lshl_b32 s39, s20, 2")
        a("s_add_u32 s26, s26, s39")
        a(f"s_mul_i32 s{73+i}, s26, {128*1152}")
        a("s_lshl_b32 s39, s22, 5")
        a("s_add_u32 s26, s26, s39")
        a("s_mul_i32 s26, s26, 49152")
        a(f"s_add_u32 s{76+i}, s26, s31")
    a("s_mul_i32 s25, s24, 43")
    a("s_lshr_b32 s25, s25, 7")
    a("s_mul_i32 s26, s25, 3")
    a("s_sub_u32 s26, s24, s26")
    a("s_mul_i32 s79, s24, 3072")
    a("s_mul_i32 s26, s26, 192")
    a(f"s_mul_i32 s25, s25, {16*1152}")
    for i in range(3):
        a("v_add_u32 v1, s26, v0")
        if i:
            a(f"v_add_u32 v1, {64*i}, v1")
        a("v_mul_u32_u24 v2, 1821, v1")
        a("v_lshrrev_b32 v2, 16, v2")
        a("v_mul_u32_u24 v3, 36, v2")
        a("v_sub_u32 v1, v1, v3")
        a("v_bfe_u32 v3, v2, 2, 1")
        a("v_lshlrev_b32 v3, 1, v3")
        a("v_xor_b32 v1, v1, v3")
        a("v_mul_u32_u24 v2, 1152, v2")
        a("v_lshl_add_u32 v1, v1, 4, v2")
        a(f"v_add_u32 v{WV+i}, s25, v1")
    a("s_and_b32 s29, s24, 1")
    a("s_lshr_b32 s30, s24, 1")
    a("s_lshl_b32 s25, s29, 12")
    b128_addr(a, KA, "s25")
    a("v_bfe_u32 v1, v0, 2, 2")
    a("v_lshrrev_b32 v2, 5, v0")
    a("v_lshl_add_u32 v2, v2, 2, v1")
    a("v_lshlrev_b32 v2, 8, v2")
    a("v_lshl_add_u32 v2, v1, 6, v2")
    a("v_bfe_u32 v1, v0, 4, 1")
    a("v_lshl_add_u32 v2, v1, 5, v2")
    a("v_and_b32 v1, 3, v0")
    a("v_lshl_add_u32 v2, v1, 3, v2")
    a("s_lshl_b32 s25, s29, 13")
    a("s_add_u32 s25, s25, 16384")
    a(f"v_add_u32 v{VA}, s25, v2")
    for t in range(1, 4):
        a(f"v_xor_b32 v{VA+t}, {t*64}, v{VA}")
    a("s_add_u32 s25, s30, 11")
    a("s_add_u32 s26, s30, 14")
    a("s_cmp_lt_u32 s30, 3")
    a("s_cselect_b32 s25, s25, s26")
    a("s_cmp_eq_u32 s30, 3")
    a("s_cselect_b32 s25, 4, s25")
    a("s_lshl_b32 s25, s25, 13")
    a("v_lshl_add_u32 v3, v0, 4, s25")
    if loader:
        a("s_and_b32 s25, s22, 3")
        a("s_lshl_b32 s25, s25, 3")
        a("s_add_u32 s25, s25, s24")
        a("s_sub_u32 s25, s25, 4")
        a(f"s_mul_i32 s25, s25, {4*1152}")
        a("v_bfe_u32 v1, v0, 2, 2")
        a("v_mul_u32_u24 v1, 1152, v1")
        a("v_and_b32 v2, 3, v0")
        a("v_lshl_add_u32 v1, v2, 7, v1")
        a("v_add_u32 v164, s25, v1")
        a("s_bitcmp1_b32 s21, 0")
        a("s_cselect_b32 s39, 1216, 0")
        a("s_sub_u32 s39, s72, s39")
        a("s_add_u32 s39, s39, 640")
        a("s_cmp_ge_u32 s24, 9")
        a("s_cselect_b32 s64, s14, s18")
        a("s_cselect_b32 s65, s15, s19")
        a(f"s_mov_b32 s66, {8*221184}")
        a("s_mov_b32 s67, 0x20000")
        a(f"s_cselect_b32 s66, s66, {WS_BYTES}")
        a("s_mul_i32 s25, s22, 221184")
        a("s_movk_i32 s26, 3456")
        a("s_lshl_b32 s31, s22, 3")
        a("s_add_u32 s31, s31, s20")
        a(f"s_mul_i32 s32, s31, {4*49152}")
        a("s_cmp_eq_u32 s24, 4")
        a("s_cselect_b32 s25, s32, s25")
        a("s_cselect_b32 s26, 3072, s26")
        a(f"s_mul_i32 s32, s31, {4*3072}")
        a(f"s_add_u32 s32, s32, {WS_CK}")
        a("s_cmp_eq_u32 s24, 7")
        a("s_cselect_b32 s25, s32, s25")
        a("s_cselect_b32 s26, 192, s26")
        a("s_cmp_eq_u32 s24, 8")
        a(f"s_cselect_b32 s25, {WS_PF + 8192}, s25")
        a("s_cselect_b32 s26, 0, s26")
        a("s_lshl_b32 s31, s22, 2")
        a("s_add_u32 s31, s31, s21")
        a("s_lshl_b32 s31, s31, 1")
        a("s_add_u32 s31, s31, s24")
        a("s_sub_u32 s31, s31, 5")
        a("s_mul_i32 s32, s31, 229376")
        a(f"s_add_u32 s32, s32, {WS_P}")
        a("s_sub_u32 s31, s24, 5")
        a("s_cmp_lt_u32 s31, 2")
        a("s_cselect_b32 s25, s32, s25")
        a("s_cselect_b32 s26, 3584, s26")
        a("v_mul_u32_u24 v1, s26, v0")
        a("v_add_u32 v166, s25, v1")


def flag_store(a, soff_sgpr, t=0, mods=" sc1"):
    a(f"v_mov_b32 v{t}, s36")
    a(f"v_mov_b32 v{t+1}, s37")
    a("s_mov_b64 exec, 1")
    a(f"buffer_store_dwordx2 {vr(t,2)}, off, {WS_}, {soff_sgpr}{mods}")
    a("s_mov_b64 exec, -1")


def poll(a, tag, voff, soff_sgpr, mask, t):
    a(f"s_mov_b32 s38, {SPIN}")
    a.label(f"L_poll_{tag}")
    a(f"buffer_load_dwordx2 {vr(t,2)}, {voff}, {WS_}, {soff_sgpr} offen sc1")
    a("s_waitcnt vmcnt(0)")
    a(f"v_cmp_eq_u64 vcc, s[36:37], {vr(t,2)}")
    a(f"s_andn2_b64 s[32:33], {mask}, vcc")
    a(f"s_cbranch_scc0 L_polld_{tag}")
    a("s_sleep 2")
    a("s_sub_u32 s38, s38, 1")
    a(f"s_cbranch_scc0 L_poll_{tag}")
    a.label(f"L_polld_{tag}")


def finish(a, cfg):
    stamp(a, cfg, 4)
    a("s_cmp_ge_u32 s30, 3")
    a("s_cselect_b32 s25, 1, 0")
    a("s_cselect_b32 s26, 3, 0")
    a("s_sub_u32 s26, s30, s26")
    a("s_lshl_b32 s26, s26, 11")
    a("v_bfe_u32 v4, v0, 4, 1")
    a("v_lshlrev_b32 v4, 10, v4")
    a("v_lshrrev_b32 v5, 5, v0")
    a("v_lshl_add_u32 v4, v5, 8, v4")
    a("v_and_b32 v5, 15, v0")
    a("v_lshl_add_u32 v4, v5, 4, v4")
    a("v_add_u32 v4, s26, v4")
    a("s_lshr_b32 s31, s21, 1")
    a("s_xor_b32 s31, s31, s25")
    a("s_mul_i32 s26, s31, 24576")
    a(f"s_add_u32 s26, s26, {OSL}")
    a("v_add_u32 v5, s26, v4")
    a("s_lshl_b32 s26, s22, 5")
    a("s_add_u32 s26, s26, s23")
    a("s_mul_i32 s35, s26, 3072")
    a("s_mul_i32 s39, s25, 1536")
    a("s_add_u32 s35, s35, s39")
    a(f"s_add_u32 s35, s35, {WS_CK}")
    a("s_mul_i32 s39, s25, 6")
    a("s_sub_u32 s39, s24, s39")
    a("s_lshl_b32 s39, s39, 8")
    a("v_lshl_add_u32 v11, v0, 2, s39")
    a("s_lshl_b32 s26, s26, 2")
    a("s_lshl_b32 s25, s25, 1")
    a("s_add_u32 s26, s26, s25")
    a("s_add_u32 s26, s26, s29")
    a("s_mul_i32 s34, s26, 12288")
    a("v_add_f32 v12, v12, v13")
    a("s_lshl_b32 s25, s24, 8")
    a(f"s_add_u32 s25, s25, {MISC}")
    a("v_lshl_add_u32 v3, v0, 2, s25")
    a("ds_write_b32 v3, v12")
    a(f"s_mov_b32 s25, {f32bits(2.0**-30):#x}")
    a(f"s_mov_b32 s26, {f32bits(2.0**28):#x}")
    a("v_cmp_ge_f32 vcc, v12, s25")
    a("v_cmp_le_f32 s[32:33], v12, s26")
    a("s_and_b64 vcc, vcc, s[32:33]")
    a("s_cmp_eq_u64 vcc, -1")
    a("s_cselect_b32 s25, 0, 1")
    if cfg.force_fb:
        a("s_mov_b32 s25, 1")
    a("s_cmp_eq_u32 s3, 0")
    a("s_cselect_b32 s25, s25, 0")
    a("s_lshl_b32 s26, s24, 2")
    a(f"s_add_u32 s26, s26, {M_ST}")
    a("v_mov_b32 v6, s26")
    a("v_mov_b32 v7, s25")
    a("v_mov_b32 v8, s36")
    a("v_mov_b32 v9, s37")
    a("s_mov_b64 exec, 1")
    a("ds_write_b32 v6, v7")
    a("s_cmp_eq_u32 s24, 0")
    a("s_cselect_b64 exec, 1, 0")
    a(f"ds_write_b64 v6, v[8:9] offset:{M_NONCE - M_ST}")
    a("s_mov_b64 exec, -1")
    a("s_lshl_b32 s25, s30, 9")
    a(f"s_add_u32 s25, s25, {MISC}")
    a("v_and_b32 v3, 31, v0")
    a("v_lshl_add_u32 v3, v3, 2, s25")
    a("v_min_u32 v2, 11, v0")
    a("v_lshlrev_b32 v2, 2, v2")
    a(f"v_add_u32 v2, {M_ST}, v2")
    a(f"v_mov_b32 v1, {M_NONCE}")
    a("s_mov_b32 s32, 0x00003f80")
    a("s_mov_b32 s33, 0x3f800000")
    a("s_cmp_eq_u32 s29, 0")
    a("s_cbranch_scc1 L_x_kh0")
    for kh in (1, 0):
        if kh == 0:
            a.label("L_x_kh0")
        send = O + 32 * (1 - kh)
        keep = O + 32 * kh
        for t2 in range(2):
            for gp in range(2):
                d = Q + 4 * (2 * t2 + gp)
                b0 = send + 16 * t2 + 8 * gp
                for i in range(4):
                    a(f"v_cvt_pk_bf16_f32 v{d+i}, v{b0+2*i}, v{b0+2*i+1}")
                a(f"ds_write_b128 v5, {vr(d,4)} offset:{(1-kh)*12288 + t2*6144 + gp*512}")
        a("s_waitcnt lgkmcnt(0)")
        a("s_barrier")
        a("ds_read_b32 v10, v2")
        a("ds_read2_b32 v[6:7], v3 offset0:0 offset1:32")
        a("ds_read2_b32 v[8:9], v3 offset0:64 offset1:96")
        a("ds_read_b64 v[12:13], v1")
        for t2 in range(2):
            for gp in range(2):
                a(f"ds_read_b128 {vr(POOL+4*(2*t2+gp),4)}, v5 offset:{kh*12288 + t2*6144 + gp*512}")
        a("v_cmp_ne_u32 vcc, 0, v10")
        a("v_add_f32 v6, v6, v7")
        a("v_add_f32 v8, v8, v9")
        a("v_add_f32 v6, v6, v8")
        a("v_rcp_f32 v6, v6")
        a("v_readfirstlane_b32 s36, v12")
        a("s_waitcnt lgkmcnt(0)")
        a("s_cbranch_vccnz L_restart")
        a("v_mov_b32 v7, v6")
        a("s_and_b32 s37, s36, 0xfffeffff")
        a("s_or_b32 s37, s37, 0x20001")
        for t2 in range(2):
            for gp in range(2):
                b0 = keep + 16 * t2 + 8 * gp
                p = POOL + 4 * (2 * t2 + gp)
                for i in range(4):
                    a(f"v_dot2c_f32_bf16 v{b0+2*i}, s32, v{p+i}")
                    a(f"v_dot2c_f32_bf16 v{b0+2*i+1}, s33, v{p+i}")
        for t2 in range(2):
            for gp in range(2):
                b0 = keep + 16 * t2 + 8 * gp
                d = Q + 4 * (2 * t2 + gp)
                for i in range(4):
                    a(f"v_pk_mul_f32 {vr(b0+2*i,2)}, {vr(b0+2*i,2)}, v[6:7]")
                for i in range(4):
                    a(f"v_cvt_pk_bf16_f32 v{d+i}, v{b0+2*i}, v{b0+2*i+1}")
                a(f"ds_write_b128 v5, {vr(d,4)} offset:{kh*12288 + t2*6144 + gp*512}")
                a(f"s_add_u32 s28, s34, {t2*6144}")
                a(f"buffer_store_dwordx4 {vr(d,4)}, v4, {WS_}, s28 offen offset:{gp*512}{cfg.omod}")
                for i in range(4):
                    a(f"v_dot2c_i32_i16 v12, s37, v{d+i}")
        a(f"buffer_store_dword v12, v11, {WS_}, s35 offen{cfg.omod}")
        if kh == 1:
            a("s_branch L_x_done")
    a.label("L_x_done")
    a("s_waitcnt vmcnt(8) lgkmcnt(0)")


def oproj_compute(a, cfg):
    ACC, AF, BF = 60, 36, 12
    NP = 6
    a("v_lshrrev_b32 v2, 5, v0")
    a("v_lshlrev_b32 v2, 4, v2")
    a("v_bfe_u32 v3, v0, 4, 1")
    a("v_lshl_add_u32 v2, v3, 2, v2")
    a("v_bfe_u32 v1, v0, 2, 2")
    a("v_add_u32 v2, v2, v1")
    a("v_mul_u32_u24 v2, 576, v2")
    a("v_and_b32 v1, 3, v0")
    a("v_lshl_add_u32 v2, v1, 3, v2")
    a("s_and_b32 s25, s24, 1")
    a("s_mul_i32 s26, s25, 288")
    a("v_add_u32 v2, s26, v2")
    a("v_lshlrev_b32 v3, 5, v3")
    a("v_add_u32 v4, v2, v3")
    a("v_sub_u32 v5, v2, v3")
    a("s_cmp_eq_u32 s25, 0")
    a("s_cselect_b64 vcc, -1, 0")
    a("v_cndmask_b32 v6, v5, v4, vcc")
    a("v_cndmask_b32 v5, v4, v5, vcc")
    a("v_mov_b32 v4, v6")
    a(f"v_add_u32 v6, {WSL[2]}, v4")
    a(f"v_add_u32 v7, {WSL[2]}, v5")
    a("s_lshr_b32 s25, s24, 1")
    a("s_mul_i32 s25, s25, 3072")
    a(f"s_add_u32 s25, s25, {OSL}")
    a("v_lshl_add_u32 v8, v0, 4, s25")
    a("s_lshl_b32 s25, s22, 2")
    a("s_add_u32 s25, s25, s21")
    a("s_lshl_b32 s26, s25, 2")
    a("s_add_u32 s26, s26, s24")
    a("s_lshl_b32 s26, s26, 4")
    a("s_add_u32 s26, s26, s20")
    a("s_mul_i32 s26, s26, 7168")
    a(f"s_add_u32 s26, s26, {WS_P}")
    a("s_lshl_b32 s25, s24, 1")
    a("s_sub_u32 s31, s20, s25")
    for g in range(2):
        a(f"s_cmp_eq_u32 s31, {g}")
        a("s_cselect_b32 s25, 0x40000000, 0")
        a(f"v_lshl_add_u32 v{2+g}, v0, 4, s25")
    a("s_mul_i32 s25, s20, 7168")
    a(f"s_add_u32 s25, s25, {RED}")
    a("v_lshl_add_u32 v1, v0, 4, s25")
    a("s_lshl_b32 s25, s22, 2")
    a("s_add_u32 s25, s25, s21")
    a("s_lshl_b32 s25, s25, 5")
    a("s_add_u32 s25, s25, s20")
    a("s_lshl_b32 s25, s25, 2")
    a(f"s_add_u32 s35, s25, {WS_PF}")
    a("v_or_b32 v9, s24, v0")
    a("v_min_u32 v9, 1, v9")
    a("v_lshlrev_b32 v9, 30, v9")
    a("v_mov_b32 v10, s36")
    hint = f"buffer_store_dword v10, v9, {WS_}, s35 offen{cfg.pmod}"
    a("s_barrier")
    stamp(a, cfg, 5)
    if cfg.prio:
        a("s_setprio 2")

    def aread(idx):
        k, nt_ = divmod(idx, 9)
        j = k >> 1
        f = AF + 4 * (idx % NP)
        sl = j % 3
        reg = 4 + (nt_ & 1) + (2 if sl == 2 else 0)
        base = (WSL[sl] if sl < 2 else 0) + (k & 1) * 18432 + nt_ * 32
        return [f"ds_read_b64_tr_b16 {vr(f+2*rd,2)}, v{reg} offset:{base + rd*8*576}" for rd in range(2)]

    def bread(k):
        j = k >> 1
        return [f"ds_read_b128 {vr(BF+12*(k&1)+4*qq,4)}, v8 offset:{(j%4)*12288 + (k&1)*6144 + qq*1024}" for qq in range(3)]

    pend = []
    nexta = 0
    avail = 18
    b0 = bread(0)
    r0 = aread(0)
    for x in [r0[0], r0[1], b0[0], b0[1], b0[2]]:
        a(x)
    nexta = 1
    while nexta < NP - 1:
        for x in aread(nexta):
            a(x)
        nexta += 1
    for idx in range(144):
        k, nt_ = divmod(idx, 9)
        if idx % 18 == 15 and idx + 3 < 144:
            j1 = idx // 18 + 1
            assert not pend and nexta == avail
            if j1 == 1:
                a("s_waitcnt vmcnt(5)")
            if j1 == 2:
                stamp(a, cfg, 6)
            a("s_waitcnt lgkmcnt(0)")
            a("s_barrier")
            if j1 == 2:
                stamp(a, cfg, 7)
            avail += 18
            ra = aread(nexta)
            nexta += 1
            pend += ra + bread(k + 1)
        if idx % 18 == 1:
            pend += bread(k + 1)
        while nexta < avail and nexta < idx + NP:
            pend += aread(nexta)
            nexta += 1
        f = AF + 4 * (idx % NP)
        if idx == cfg.hint:
            a(hint)
        for qq in range(3):
            n = 3 if len(pend) > 4 else (2 if len(pend) > 2 else 1)
            if qq == 2:
                n = len(pend) if idx % 18 == 14 else n
            d = ACC + (qq * 9 + nt_) * 4
            c = "0" if k == 0 else vr(d, 4)
            a(f"v_mfma_f32_16x16x32_bf16 {vr(d,4)}, {vr(f,4)}, {vr(BF+12*(k&1)+4*qq,4)}, {c}")
            for x in pend[:n]:
                a(x)
            pend = pend[n:]
    stamp(a, cfg, 8)
    if cfg.hint == 144:
        a(hint)
    if cfg.hint > 144:
        a("v_mov_b32 v0, v9")
    for g in range(2):
        base = 4 + 28 * g
        if cfg.hint == 145 and g == 1:
            a(f"v_mov_b32 v60, s36")
            a(hint.replace("v10", "v60").replace("v9", "v0"))
        a(f"v_mov_b32 v{base+27}, s36")
        for c in range(7):
            d = base + 4 * c
            if c < 6:
                qq, p_ = divmod(6 * g + c, 4)
                src = [ACC + 4 * (qq * 9 + 2 * p_) + 2 * i for i in range(4)]
            else:
                t = ACC + 4 * (8 + 9 * g)
                src = [t, t + 2, ACC + 4 * 26 + 2 * g]
            for i, r in enumerate(src):
                a(f"v_cvt_pk_bf16_f32 v{d+i}, v{r}, v{r+1}")
            if c == 6:
                for i in range(len(src)):
                    a(f"v_dot2c_i32_i16 v{base+27}, s37, v{d+i}")
            if c % 4 == 0:
                a(f"s_add_u32 s28, s26, {g*8*7168 + c*1024}")
            a(f"buffer_store_dwordx4 {vr(d,4)}, v{2+g}, {WS_}, s28 offen offset:{(c%4)*1024}{cfg.pmod}")
            if c < 6:
                for i in range(len(src)):
                    a(f"v_dot2c_i32_i16 v{base+27}, s37, v{d+i}")
    if cfg.hint == 146:
        a(f"v_mov_b32 v60, s36")
        a(hint.replace("v10", "v60").replace("v9", "v0"))
    if cfg.e0:
        a("s_barrier")
    stamp(a, cfg, 9)
    for g in range(2):
        base = 4 + 28 * g
        a(f"s_cmp_eq_u32 s31, {g}")
        a(f"s_cbranch_scc0 L_pown{g}")
        for c in range(7):
            a(f"ds_write_b128 v1, {vr(base+4*c,4)} offset:{c*1024}")
        a.label(f"L_pown{g}")
    a("s_waitcnt lgkmcnt(0)")
    a("s_barrier")


def oproj_wload(a, cfg):
    a("s_barrier")
    a("s_sub_u32 s25, s24, 10")
    a("s_mul_i32 s79, s25, 18432")
    a(f"s_mul_i32 s25, s25, {32*1152}")
    a("v_mul_u32_u24 v1, 1821, v0")
    a("v_lshl_add_u32 v2, v0, 4, s25")
    a("s_movk_i32 s26, 576")
    for i in range(9):
        a(f"v_add_u32 v3, {64*i*1821}, v1")
        a("v_lshrrev_b32 v4, 16, v3")
        a(f"v_mad_u32_u24 v{20+i}, v4, s26, v2")
        a("v_lshrrev_b32 v3, 13, v3")
        a(f"v_bitop3_b32 v{20+i}, v{20+i}, v3, 32 bitop3:0x78")
    tr = Track()
    tr.issue(("W", 1), 3)
    tr.issue("st", 5)
    for j in range(0, 8):
        if j >= 1:
            a(f"s_waitcnt vmcnt({tr.count({('W', j)})})")
            a("s_barrier")
        jn = j + 2
        if jn < 8:
            sg, lit = wsoff(jn)
            for g in range(2):
                for i in range(9):
                    dma(a, f"v{20+i}", WO_, (sg, lit + g * 16 * 1152 + i * 1024), WSL[jn % 3] + g * 9216 + i * 1024, base="s79")
            tr.issue(("W", jn), 18)


def ck_check(a, regs, ck, h):
    a(f"v_mov_b32 v{h}, s36")
    for r in regs:
        a(f"v_dot2c_i32_i16 v{h}, s37, v{r}")
    a(f"v_cmp_ne_u32 vcc, v{h}, v{ck}")


def oproj_oload(a, cfg):
    a("s_mul_i32 s25, s29, 12288")
    a("v_add_u32 v4, s25, v4")
    a("v_add_u32 v6, 6144, v4")
    a(f"v_add_u32 v5, {OSL}, v4")
    for r in range(3):
        a(f"s_lshr_b32 s{72+r}, s{76+r}, 4")
        a(f"s_add_u32 s{72+r}, s{72+r}, {WS_CK}")

    def loads(r, mods=None):
        mods = cfg.ordm if mods is None else mods
        b = 16 + 20 * r
        for t2 in range(2):
            for gp in range(2):
                a(f"buffer_load_dwordx4 {vr(b+4*(2*t2+gp),4)}, v{4+2*t2}, {WS_}, s{76+r} offen offset:{gp*512}{mods}")
        a(f"buffer_load_dword v{b+16}, v11, {WS_}, s{72+r} offen{mods}")
        a.forget_vm()

    def settle(r, n):
        b = 16 + 20 * r
        a(f"s_mov_b32 s38, {SPIN}")
        a(f"s_waitcnt vmcnt({n})")
        a.label(f"L_op{r}")
        ck_check(a, range(b, b + 16), b + 16, 12)
        a(f"s_cbranch_vccz L_opd{r}")
        if cfg.osleep:
            a(f"s_sleep {cfg.osleep}")
        if cfg.ordm != " sc1":
            a(f"s_cmp_lt_u32 s38, {SPIN - cfg.nfast}")
            a(f"s_cbranch_scc1 L_ops{r}")
            loads(r)
            a(f"s_branch L_opw{r}")
            a.label(f"L_ops{r}")
        loads(r, " sc1")
        a.label(f"L_opw{r}")
        a("s_sub_u32 s38, s38, 1")
        a("s_waitcnt vmcnt(0)")
        a(f"s_cbranch_scc0 L_op{r}")
        a.label(f"L_opd{r}")

    def writes(r):
        b = 16 + 20 * r
        for t2 in range(2):
            for gp in range(2):
                a(f"ds_write_b128 v5, {vr(b+4*(2*t2+gp),4)} offset:{(24576 if r != 1 else 0) + t2*6144 + gp*512}")
        a("s_waitcnt lgkmcnt(0)")
    a("s_barrier")
    a("s_waitcnt vmcnt(5)")
    a("s_barrier")
    if cfg.odelay:
        a("s_waitcnt vmcnt(0)")
        stamp(a, cfg, 5)
        for _ in range(cfg.odelay):
            a("s_sleep 40")
        stamp(a, cfg, 7)
    loads(0)
    settle(0, 0)
    stamp(a, cfg, 6)
    loads(1)
    loads(2)
    writes(0)
    a("s_barrier")
    a("s_barrier")
    settle(1, 5)
    writes(1)
    a("s_barrier")
    settle(2, 0)
    writes(2)
    a("s_barrier")
    a("s_barrier")
    a("s_barrier")


def reduce_(a, cfg):
    a("s_sub_u32 s27, s24, 4")
    a("s_lshl_b32 s28, s22, 2")
    a("s_add_u32 s28, s28, s21")
    a("s_lshl_b32 s28, s28, 3")
    a("s_add_u32 s28, s28, s20")
    a("s_lshl_b32 s28, s28, 3")
    a("s_add_u32 s28, s28, s27")
    a("s_mul_i32 s28, s28, 7168")
    a(f"s_add_u32 s72, s28, {WS_P}")
    a("s_add_u32 s73, s72, 4096")
    a("v_lshlrev_b32 v1, 4, v0")
    a("s_mul_i32 s25, s27, 7168")
    a(f"s_add_u32 s25, s25, {RED}")
    a("v_add_u32 v5, s25, v1")
    a("s_lshl_b32 s25, s27, 10")
    a(f"s_add_u32 s25, s25, {RED}")
    a("v_add_u32 v6, s25, v1")
    a("s_mul_i32 s25, s22, 221184")
    srd(a, 64, 14, 15, "s25", 221184)
    a("s_lshr_b32 s26, s20, 1")
    a("s_and_b32 s31, s20, 1")
    a("s_mul_i32 s29, s31, 6")
    a("s_add_u32 s29, s29, s27")
    a("s_lshr_b32 s74, s29, 2")
    a("s_and_b32 s75, s29, 3")
    a("s_lshl_b32 s75, s75, 6")
    a("s_cmp_eq_u32 s27, 6")
    a("s_cselect_b32 s74, s31, s74")
    a("s_cselect_b32 s75, 256, s75")
    a("s_and_b32 s25, s21, 2")
    a("s_lshr_b32 s29, s26, 1")
    a("s_add_u32 s25, s25, s29")
    a("s_mul_i32 s25, s25, 3")
    a("s_add_u32 s25, s25, s74")
    a(f"s_mul_i32 s25, s25, {16*1152}")
    a("s_add_u32 s25, s25, s75")
    a("s_and_b32 s29, s21, 1")
    a("s_lshl_b32 s29, s29, 1")
    a("s_and_b32 s26, s26, 1")
    a("s_add_u32 s29, s29, s26")
    a("s_mul_i32 s29, s29, 288")
    a("s_add_u32 s25, s25, s29")
    a("v_and_b32 v2, 15, v0")
    a("v_mul_u32_u24 v2, 1152, v2")
    a("v_add_u32 v2, s25, v2")
    a("v_lshrrev_b32 v3, 4, v0")
    a("v_lshl_add_u32 v7, v3, 3, v2")
    a("v_bfe_u32 v3, v0, 4, 1")
    a("v_lshl_add_u32 v2, v3, 5, v2")
    a("v_lshrrev_b32 v3, 5, v0")
    a("v_lshl_add_u32 v2, v3, 4, v2")
    a(f"s_mul_i32 s75, s31, {16*1152 - 4}")
    a(f"s_sub_u32 s75, {32*1152}, s75")
    for i in range(8):
        a(f"v_mov_b32 v{8+i}, 0")
    a("s_mov_b32 s32, 0x00003f80")
    a("s_mov_b32 s33, 0x3f800000")
    a(f"s_mov_b32 s38, {SPIN}")
    if cfg.e0:
        a("s_barrier")
    a("s_cmp_eq_u32 s27, s20")
    a("s_cbranch_scc1 L_rown")
    a("s_lshl_b32 s25, s22, 2")
    a("s_add_u32 s25, s25, s21")
    a("s_lshl_b32 s25, s25, 5")
    a("s_add_u32 s25, s25, s27")
    a("s_lshl_b32 s25, s25, 2")
    a(f"s_add_u32 s35, s25, {WS_PF}")
    a("s_mov_b64 exec, 1")
    a.label("L_ph")
    a(f"buffer_load_dword v4, off, {WS_}, s35 sc1")
    a("v_cmp_eq_u32 vcc, s36, v4")
    a("s_cbranch_vccnz L_phd")
    if cfg.hsleep:
        a(f"s_sleep {cfg.hsleep}")
    a("s_sub_u32 s38, s38, 1")
    a("s_cbranch_scc0 L_ph")
    a.label("L_phd")
    a("s_mov_b64 exec, -1")
    a(f"s_mov_b32 s38, {SPIN}")
    stamp(a, cfg, 8)
    a.label("L_pp")
    for c in range(7):
        a(f"buffer_load_dwordx4 {vr(16+4*c,4)}, v1, {WS_}, s{72 + c//4} offen offset:{(c%4)*1024}{cfg.prd}")
    ck_check(a, range(16, 43), 43, 4)
    a("s_cbranch_vccz L_ppd")
    if cfg.psleep:
        a(f"s_sleep {cfg.psleep}")
    a("s_sub_u32 s38, s38, 1")
    a("s_cbranch_scc0 L_pp")
    a.label("L_ppd")
    for c in range(7):
        a(f"ds_write_b128 v5, {vr(16+4*c,4)} offset:{c*1024}")
    a.label("L_rown")
    stamp(a, cfg, 9)
    a("s_waitcnt lgkmcnt(0)")
    a("s_barrier")
    a("s_cmp_eq_u32 s27, 7")
    a("s_cbranch_scc1 L_out")
    for g in range(8):
        a(f"ds_read_b128 {vr(16+4*g,4)}, v6 offset:{g*7168}")
    for g in range(8):
        for i in range(4):
            s = 16 + 4 * g + i
            a(f"v_dot2c_f32_bf16 v{8+2*i}, s32, v{s}")
            a(f"v_dot2c_f32_bf16 v{9+2*i}, s33, v{s}")
    for i in range(4):
        a(f"v_cvt_pk_bf16_f32 v{48+i}, v{8+2*i}, v{9+2*i}")
    a("s_cmp_eq_u32 s27, 6")
    a("s_cbranch_scc1 L_r6")
    a("v_permlane16_swap_b32 v48, v50")
    a("v_permlane16_swap_b32 v49, v51")
    a(f"buffer_store_dwordx4 v[48:51], v2, {OUT_}, 0 offen")
    a("s_branch L_out")
    a.label("L_r6")
    a(f"buffer_store_dwordx2 v[48:49], v7, {OUT_}, 0 offen")
    a(f"buffer_store_dword v50, v7, {OUT_}, s75 offen")


def kernel(a, cfg, name):
    a.raw(f".globl {name}")
    a.raw(".p2align 8")
    a.raw(f".type {name},@function")
    a.raw(f"{name}:")
    a.reset_state()
    a("s_load_dwordx16 s[4:19], s[0:1], 0")
    a("s_memrealtime s[36:37]")
    a("s_cmp_ge_u32 s2, 256")
    a("s_cbranch_scc1 L_end")
    if cfg.mapping == 0:
        a("s_and_b32 s21, s2, 3")
        a("s_bfe_u32 s20, s2, 0x30003")
        a("s_and_b32 s22, s2, 4")
        a("s_lshr_b32 s25, s2, 6")
        a("s_add_u32 s22, s22, s25")
    elif cfg.mapping == 2:
        a("s_bfe_u32 s21, s2, 0x20003")
        a("s_and_b32 s20, s2, 3")
        a("s_lshl_b32 s20, s20, 1")
        a("s_bfe_u32 s25, s2, 0x10005")
        a("s_add_u32 s20, s20, s25")
        a("s_and_b32 s22, s2, 4")
        a("s_lshr_b32 s25, s2, 6")
        a("s_add_u32 s22, s22, s25")
    else:
        a("s_and_b32 s22, s2, 7")
        a("s_bfe_u32 s21, s2, 0x20003")
        a("s_lshr_b32 s20, s2, 5")
    a("s_lshl_b32 s23, s20, 2")
    a("s_add_u32 s23, s23, s21")
    a("v_lshrrev_b32 v1, 6, v0")
    a("v_and_b32 v0, 63, v0")
    a("v_readfirstlane_b32 s24, v1")
    a("s_mov_b32 s3, 0")
    if cfg.cpf:
        a("s_getpc_b64 s[32:33]")
        a.raw("L_pc:")
        a("s_bfe_u32 s25, s2, 0x10003")
        a("s_mul_i32 s25, s25, 12")
        a("s_add_u32 s25, s25, s24")
        a("s_mul_i32 s25, s25, 12*128")
        a("v_lshl_add_u32 v2, v0, 7, s25")
        a("v_min_u32 v2, L_end-L_pc, v2")
        a("v_mov_b32 v3, s33")
        a("v_add_co_u32 v2, vcc, s32, v2")
        a("v_addc_co_u32 v3, vcc, 0, v3, vcc")
        a("s_mov_b64 exec, 0xfff")
        a("global_load_dword v167, v[2:3], off")
        a.forget_vm()
        a("s_mov_b64 exec, -1")
    if cfg.stamps:
        for i in range(82, 102):
            a(f"s_mov_b32 s{i}, 0")
    a("s_waitcnt lgkmcnt(0)")
    if cfg.stamps:
        a("s_mov_b64 s[80:81], s[36:37]")
    a.label("L_start")
    a("s_cmp_lt_u32 s24, 4")
    a("s_cbranch_scc1 L_qc")
    a("s_sub_u32 s26, s24, 4")
    a("s_lshl_b32 s27, s26, 10")
    swz4_voff(a, "v13", 8192, "s26", 4 * 8192)
    a("s_lshl_b32 s31, s23, 8")
    srd(a, 44, 10, 11, "s31", 576 * 8192 - 31 * 256)
    if cfg.rot:
        a("s_and_b32 s25, s22, 3")
        a("s_lshl_b32 s25, s25, 1")
        if cfg.mapping == 2:
            a("s_bfe_u32 s31, s2, 0x30003")
            a("s_add_u32 s25, s25, s31")
        else:
            a("s_add_u32 s25, s25, s20")
        a("s_cmp_ge_u32 s25, 9")
        a("s_cselect_b32 s31, 9, 0")
        a("s_sub_u32 s25, s25, s31")
        a("s_lshl_b32 s34, s25, 7")
        a("s_lshl_b32 s35, s25, 19")
    else:
        a("s_mov_b32 s34, 0")
        a("s_mov_b32 s35, 0")
    tr = Track()
    cnt = {"x": 0, "w": 0, "k": 0, "xs": False, "ks": False}

    def qop(c, bar):
        if c == "x":
            if not cnt["xs"]:
                swz8_voff(a, "v12", 1152, "s26", 8 * 1152)
                a("s_mul_i32 s25, s22, 221184")
                srd(a, 40, 4, 5, "s25", 221184)
                cnt["xs"] = True
            ks, i = divmod(cnt["x"], 3)
            assert ks < 9 and bar >= ks - 2, (c, ks, bar)
            dma(a, "v12", X_, ("s34", i * 64 * 1152), QSL[ks % 3] + 16384 + i * 8192)
            tr.issue(("Q", ks))
            cnt["x"] += 1
            if i == 2:
                a("s_add_u32 s34, s34, 128")
                a("s_cmp_eq_u32 s34, 1152")
                a("s_cselect_b32 s34, 0, s34")
        elif c == "w":
            ks, i = divmod(cnt["w"], 2)
            assert ks < 9 and bar >= ks - 2, (c, ks, bar)
            dma(a, "v13", WQ_, ("s35", i * 32 * 8192), QSL[ks % 3] + i * 8192)
            tr.issue(("Q", ks))
            cnt["w"] += 1
            if i == 1:
                a(f"s_add_u32 s35, s35, {64*8192}")
                a(f"s_cmp_eq_u32 s35, {576*8192}")
                a("s_cselect_b32 s35, 0, s35")
        else:
            op = KVOPS[cnt["k"]]
            assert op[1] == 0 or (bar >= 6 + op[1] and not (op[0] == "V" and op[1] >= 3) and op[1] <= 3), (op, bar)
            kvop(a, cfg, tr, op)
            cnt["k"] += 1
    for c in cfg.q_sched[0]:
        qop(c, -1)
    swz8_voff(a, "v14", 256, "s26", 2048)
    swz4_voff(a, "v15", 256, "s26", 1024)
    common_setup(a, cfg)
    for i in range(10):
        if i < 9:
            assert cnt["x"] >= 3 * (i + 1) and cnt["w"] >= 2 * (i + 1)
            a(f"s_waitcnt vmcnt({tr.count({('Q', i)})})")
        a("s_barrier")
        for c in cfg.q_sched[i + 1]:
            qop(c, i)
        if i == 0:
            late_setup(a, cfg, True)
    assert cnt["k"] >= 4
    a(f"s_waitcnt vmcnt({tr.count({('K',0),('V',0)})})")
    a("s_barrier")
    stamp(a, cfg, 3)
    a("s_cmp_lg_u32 s3, 0")
    a("s_cbranch_scc1 L_slow_l")
    trs = Track(); trs.q = list(tr.q)
    nop = cnt["k"]
    attention(a, cfg, True, tr, False, nop)
    a("s_branch L_fin")
    a.label("L_qc")
    ACC, FR = 64, 16
    a("s_lshl_b32 s25, s22, 5")
    srd(a, 68, 16, 17, "s25", 32)
    a("s_or_b32 s36, s36, 1")
    a("v_mov_b32 v166, s36")
    a("v_mov_b32 v167, s37")
    a("s_or_b32 s25, s23, s24")
    a("s_or_b32 s25, s25, s3")
    a("s_cmp_eq_u32 s25, 0")
    a("s_cbranch_scc0 L_nolead")
    a("s_mov_b64 exec, 1")
    a(f"buffer_store_dwordx2 v[166:167], off, {DBG_}, 0 sc0 sc1")
    a("s_mov_b64 exec, -1")
    a.label("L_nolead")
    a("s_and_b32 s29, s24, 1")
    a("s_lshr_b32 s30, s24, 1")
    a("s_mul_i32 s25, s30, 12288")
    a(f"s_add_u32 s25, s25, {QSL[0] + 16384}")
    b128_addr(a, 56, "s25")
    a("v_bfe_u32 v1, v0, 2, 2")
    a("v_lshrrev_b32 v2, 5, v0")
    a("v_lshl_add_u32 v2, v2, 3, v1")
    a("v_lshlrev_b32 v2, 8, v2")
    a("s_lshl_b32 s25, s29, 1")
    a("v_xor_b32 v1, s25, v1")
    a("v_lshl_add_u32 v2, v1, 6, v2")
    a("v_bfe_u32 v1, v0, 4, 1")
    a("v_lshl_add_u32 v2, v1, 5, v2")
    a("v_and_b32 v1, 1, v0")
    a("v_lshl_add_u32 v2, v1, 4, v2")
    a("v_bfe_u32 v1, v0, 1, 1")
    a("v_lshl_add_u32 v60, v1, 3, v2")
    a(f"v_add_u32 v60, {QSL[0]}, v60")
    a("v_xor_b32 v61, 64, v60")
    for i in range(4):
        a(f"v_add_u32 v{12+i}, {QSL[1]-QSL[0]}, v{56+i}")
    for i in range(2):
        a(f"v_add_u32 v{62+i}, {QSL[1]-QSL[0]}, v{60+i}")
    a("s_lshl_b32 s26, s29, 12")
    a("v_lshl_add_u32 v1, v0, 4, s26")
    a("s_cmp_eq_u32 s30, 0")
    for qq in range(3):
        a(f"s_cselect_b32 s25, {11+qq}, {[4,18,19][qq]}")
        a(f"v_lshl_add_u32 v{163+qq}, s25, 13, v1")
    common_setup(a, cfg)
    late_setup(a, cfg, False)

    def frag_reads(g):
        ks, sub, st = g >> 2, g & 3, g & 1
        sl = ks % 3
        f = FR + 20 * st
        xb, wb = (12, 62) if sl == 1 else (56, 60)
        so = QSL[sl] - QSL[0] if sl != 1 else 0
        L = []
        for tt in range(2):
            for rd in range(2):
                L.append(f"ds_read_b64_tr_b16 {vr(f+4*tt+2*rd,2)}, v{wb+tt} offset:{so + sub*4096 + rd*1024}")
        for qq in range(3):
            L.append(f"ds_read_b128 {vr(f+8+4*qq,4)}, v{xb+sub} offset:{so + qq*4096}")
        return [L[0], L[1], L[4], L[5], L[6], L[2], L[3]]

    a("s_barrier")
    stamp(a, cfg, 1)
    for r in frag_reads(0):
        a(r)
    for g in range(36):
        st = g & 1
        f = FR + 20 * st
        nxt = frag_reads(g + 1) if g < 35 else []
        newstage = (g & 3) == 3
        if newstage:
            a("s_waitcnt lgkmcnt(0)")
        mf = []
        for tt in range(2):
            for qq in range(3):
                d = ACC + (tt * 3 + qq) * 16
                c = "0" if g == 0 else vr(d, 16)
                mf.append(f"v_mfma_f32_32x32x16_bf16 {vr(d,16)}, {vr(f+4*tt,4)}, {vr(f+8+4*qq,4)}, {c}")
        a(mf[0])
        if newstage:
            a("s_barrier")
        ri = 0
        for i in range(6):
            if i > 0:
                a(mf[i])
            k = 3 if i == 0 else 2
            for r in nxt[ri:ri + k]:
                a(r)
            ri += k
        if g == 13:
            a("s_cmp_eq_u32 s24, 0")
            a("s_cselect_b64 exec, 1, 0")
            a(f"buffer_load_dwordx2 v[166:167], off, {DBG_}, 0 sc0 sc1")
            a("s_mov_b64 exec, -1")
    stamp(a, cfg, 2)
    a(f"s_mov_b32 s32, {f32bits(math.log2(math.e)/math.sqrt(128.0)):#x}")
    a("s_mov_b32 s33, s32")
    n = 0
    for tt in range(2):
        for qq in range(3):
            d = ACC + (tt * 3 + qq) * 16
            for u in range(2):
                t0 = FR + 4 * (n % 8)
                n += 1
                for i in range(4):
                    a(f"v_pk_mul_f32 {vr(d+8*u+2*i,2)}, {vr(d+8*u+2*i,2)}, s[32:33]")
                for i in range(4):
                    a(f"v_cvt_pk_bf16_f32 v{t0+i}, v{d+8*u+2*i}, v{d+8*u+2*i+1}")
                a(f"ds_write_b128 v{163+qq}, {vr(t0,4)} offset:{(2*tt + u)*1024}")
    a("v_readfirstlane_b32 s36, v166")
    a("v_readfirstlane_b32 s37, v167")
    a(f"s_mov_b32 s38, {SPIN}")
    a("s_waitcnt lgkmcnt(0)")
    a.label("L_nonce")
    a("s_cmp_lg_u32 s36, 0")
    a("s_cbranch_scc1 L_nonced")
    a(f"buffer_load_dwordx2 v[166:167], off, {DBG_}, 0 sc0 sc1")
    a("v_readfirstlane_b32 s36, v166")
    a("v_readfirstlane_b32 s37, v167")
    a("s_sub_u32 s38, s38, 1")
    a("s_cbranch_scc0 L_nonce")
    a.label("L_nonced")
    a("s_barrier")
    stamp(a, cfg, 3)
    a("s_cmp_lg_u32 s3, 0")
    a("s_cbranch_scc1 L_slow_n")
    attention(a, cfg, False, Track(), False, nop)
    a.label("L_fin")
    finish(a, cfg)
    a("s_cmp_lt_u32 s24, 4")
    a("s_cbranch_scc1 L_oc")
    a("s_cmp_lt_u32 s24, 10")
    a("s_cbranch_scc1 L_ow")
    oproj_wload(a, cfg)
    a("s_branch L_red")
    a.label("L_ow")
    oproj_oload(a, cfg)
    a.label("L_red")
    reduce_(a, cfg)
    a("s_branch L_out")
    a.label("L_oc")
    oproj_compute(a, cfg)
    a.label("L_out")
    if cfg.stamps:
        a("s_waitcnt vmcnt(0)")
        stamp(a, cfg, 10)
        a("s_mul_i32 s25, s2, 12")
        a("s_add_u32 s25, s25, s24")
        a("s_lshl_b32 s25, s25, 7")
        a(f"s_add_u32 s25, s25, {STAMP_OFF}")
        a("v_mov_b32 v2, 0")
        a("s_mov_b64 exec, 1")
        for i in range(11):
            a(f"v_mov_b32 v4, s{80+2*i}")
            a(f"v_mov_b32 v5, s{81+2*i}")
            a(f"buffer_store_dwordx2 v[4:5], v2, {WS_}, s25 offen offset:{8*i}")
    a.label("L_end")
    a("s_endpgm")
    a.label("L_restart")
    a("s_waitcnt vmcnt(0) lgkmcnt(0)")
    a("s_barrier")
    a("s_mov_b32 s3, 1")
    a("s_branch L_start")
    a.label("L_slow_l")
    max_pass(a, "l")
    attention(a, cfg, True, trs, True, nop)
    a("s_branch L_fin")
    a.label("L_slow_n")
    max_pass(a, "n")
    attention(a, cfg, False, Track(), True, nop)
    a("s_branch L_fin")


def descriptor(name, vg):
    return f""".amdhsa_kernel {name}
  .amdhsa_next_free_vgpr {vg}
  .amdhsa_next_free_sgpr 102
  .amdhsa_accum_offset {(vg+3)//4*4}
  .amdhsa_group_segment_fixed_size 0
  .amdhsa_kernarg_size 64
  .amdhsa_user_sgpr_count 2
  .amdhsa_user_sgpr_kernarg_segment_ptr 1
  .amdhsa_system_sgpr_workgroup_id_x 1
.end_amdhsa_kernel
"""


def build(cfg):
    a = Asm()
    a.raw(HEADER.rstrip("\n"))
    a.raw("; @launch grid=(256,1,1) block=(768,1,1) lds=163840")
    a.raw('.amdgcn_target "amdgcn-amd-amdhsa--gfx950"')
    a.raw(".text")
    kernel(a, cfg, KNAME)
    print("maxv", a.maxv, "instrs", a.ninstr, "nops", a.nops_inserted, file=sys.stderr)
    a.raw('.section .rodata,"a"')
    a.raw(".p2align 6")
    a.raw(descriptor(KNAME, 168))
    return a.text()


if __name__ == "__main__":
    cfg = Cfg()
    out = sys.argv[1]
    for kv in sys.argv[2:]:
        k, v = kv.split("=")
        setattr(cfg, k, eval(v))
    if cfg.att_sched is None:
        d = {}
        pos = {0: [1, 5, 10, 14], 1: [1, 5, 10, 14], 2: [1, 5, 10, 14], 3: [1, 5, 10, 14], 4: [1, 5, 10, 14], 5: [1, 6, 11]}
        for st_, pl in pos.items():
            for p_ in pl:
                d[(st_, p_)] = "k"
        d[cfg.tpos] = d.get(cfg.tpos, "") + "t"
        d[cfg.upos] = d.get(cfg.upos, "") + "u"
        for p_ in (1, 6, 14):
            d[(6, p_)] = "w"
        for p_ in (1, 4, 7):
            d[(7, p_)] = "w"
        cfg.att_sched = d
    open(out, "w").write(build(cfg))
```
